```python
import torch

def _softmax(x, axis=-1):
    return torch.softmax(x, dim=axis)
def _gelu(x):
    return torch.nn.functional.gelu(x, approximate="tanh")
def _silu(x):
    return torch.nn.functional.silu(x)
def _sigmoid(x):
    return torch.sigmoid(x)
def _layernorm(x, axis=-1, eps=1e-5):
    m = x.mean(dim=axis, keepdim=True)
    v = x.var(dim=axis, keepdim=True, unbiased=False)
    return (x - m) / torch.sqrt(v + eps)
def _scatter_add(tgt, idx, src, axis=0):
    return tgt.clone().index_add_(axis, idx, src)
def _segment_sum(src, seg, n):
    out = torch.zeros((n,) + src.shape[1:], dtype=src.dtype)
    return out.index_add_(0, seg, src)
def _pad(x, pw):
    flat = tuple(v for pair in reversed(pw) for v in pair)
    return torch.nn.functional.pad(x, flat)

kernel_name = 'gather_scatter__cheap_equivariant_egnn__graph'

def setup_inputs():

    _w = (lambda a: (lambda t: t.to(torch.bfloat16) if t.is_floating_point() else t)(torch.as_tensor(a)))
    N, deg, D, De = 25000, 32, 64, max(16, 1)
    E = N * deg
    return {
        "h": _w((lambda *s: torch.randn(*s, dtype=torch.bfloat16) * 0.2)(N, D)),
        "pos": _w((lambda *s: torch.randn(*s, dtype=torch.bfloat16) * 0.8)(N, 3)),
        "e_attr": _w((lambda *s: torch.randn(*s, dtype=torch.bfloat16) * 0.8)(E, De)),
        "src": _w((lambda lo, hi, *s: torch.randint(lo, hi, s))(0, N, E).to(torch.int64)),
        "dst": _w((lambda lo, hi, *s: torch.randint(lo, hi, s))(0, N, E).to(torch.int64)),
        "w_e": _w(0.1 * (lambda *s: torch.randn(*s, dtype=torch.bfloat16) * 0.8)(2 * D + 1 + De, D)),
        "w_x": _w(0.1 * (lambda *s: torch.randn(*s, dtype=torch.bfloat16) * 0.2)(D, 1)),
        "w_h": _w(0.1 * (lambda *s: torch.randn(*s, dtype=torch.bfloat16) * 0.2)(2 * D, D)),
    }

def reference(h, pos, e_attr, src, dst, w_e, w_x, w_h):
    N, D = h.shape[0], h.shape[1]
    diff = pos[dst] - pos[src]
    dist2 = torch.sum(diff * diff, axis=-1, keepdims=True)
    e_in = torch.concatenate([h[dst], h[src], dist2, e_attr], axis=-1)
    m_ij = _silu(e_in @ w_e)
    coord_scale = m_ij @ w_x
    pos_new = pos + _segment_sum(diff * coord_scale, dst, N)
    m_i = _segment_sum(m_ij, dst, N)
    h_new = h + _silu(torch.concatenate([h, m_i], axis=-1) @ w_h)
    return h_new, pos_new
```

```python
import sys, os

N = 25000
E = 800000
NB = 98
CH = 3125
WS_TAB = 0
WS_REC = 0x40000
REC_STRIDE = 19584
WS_IMG = 0x600000
IMG_W1, IMG_W2, IMG_W3, IMG_WH1, IMG_WH2 = 0, 8, 16, 18, 26
WS_SIZE = 268435456
OOB = 0x7FFFFFE0


class Asm:
    def __init__(self):
        self.L = []
        self.ds = []

    def __call__(self, s):
        for line in s.split("\n"):
            line = line.strip()
            if line:
                self.L.append(line if line.endswith(":") else "    " + line)

    def c(self, s):
        self.L.append("    ; " + s)

    def dsop(self, s, tag=None):
        self(s)
        self.ds.append(tag)

    def wait_ds(self, *tags):
        idx = max(len(self.ds) - 1 - self.ds[::-1].index(t) for t in tags)
        n = len(self.ds) - 1 - idx
        assert n <= 15, n
        self(f"s_waitcnt lgkmcnt({n})")

    def srd(self, d, b, n):
        self(f"s_mov_b32 s{d}, s{b}")
        self(f"s_and_b32 s{d+1}, s{b+1}, 0xffff")
        self(f"s_mov_b32 s{d+2}, {n}")
        self(f"s_mov_b32 s{d+3}, 0x20000")

    def text(self):
        return "\n".join(self.L) + "\n"


def vr(a, n=1):
    return f"v{a}" if n == 1 else f"v[{a}:{a+n-1}]"


def desc(name, vgpr, sgpr):
    return f""".p2align 6
.amdhsa_kernel {name}
  .amdhsa_next_free_vgpr {vgpr}
  .amdhsa_next_free_sgpr {sgpr}
  .amdhsa_accum_offset {(vgpr + 3) // 4 * 4}
  .amdhsa_group_segment_fixed_size 0
  .amdhsa_kernarg_size 88
  .amdhsa_user_sgpr_count 2
  .amdhsa_user_sgpr_kernarg_segment_ptr 1
  .amdhsa_system_sgpr_workgroup_id_x 1
  .amdhsa_float_denorm_mode_32 3
.end_amdhsa_kernel
"""


def scan_row16(a, v):
    for sh in (1, 2, 4, 8):
        a("s_nop 1")
        a(f"v_add_u32_dpp v{v}, v{v}, v{v} row_shr:{sh} row_mask:0xf bank_mask:0xf bound_ctrl:0")


K1_CNT, K1_BASE, K1_STG = 0, 1024, 2048
K1_LDS = 22528


def k1(cfg):
    a = Asm()
    a("sort_kernel:")
    a("s_cmp_ge_u32 s2, 256")
    a("s_cbranch_scc1 K1_end")
    a("s_load_dwordx2 s[4:5], s[0:1], 24")
    a("s_load_dwordx2 s[6:7], s[0:1], 32")
    a("s_load_dwordx2 s[8:9], s[0:1], 80")
    a("s_load_dwordx2 s[10:11], s[0:1], 40")
    a("s_load_dwordx2 s[12:13], s[0:1], 56")
    a("v_lshrrev_b32 v1, 6, v0")
    a("v_lshlrev_b32 v2, 4, v0")
    a("v_readfirstlane_b32 s3, v1")
    a(f"s_mul_i32 s14, s2, {CH*4}")
    a("v_add_u32 v3, s14, v2")
    a("v_and_b32 v1, 63, v0")
    a("s_waitcnt lgkmcnt(0)")
    a.srd(16, 4, E * 4)
    a.srd(20, 6, E * 4)
    a.srd(24, 8, WS_SIZE)
    a("s_cmp_ge_u32 s3, 13")
    a("s_cbranch_scc1 K1_noload")
    a("buffer_load_dwordx4 v[4:7], v3, s[20:23], 0 offen nt")
    a("buffer_load_dwordx4 v[8:11], v3, s[16:19], 0 offen nt")
    a("s_branch K1_init")
    a("K1_noload:")
    a("s_cmp_lg_u32 s3, 13")
    a("s_cbranch_scc1 K1_init")
    a("s_cmp_ge_u32 s2, 34")
    a("s_cbranch_scc1 K1_init")
    a(f"s_cmp_ge_u32 s2, {IMG_WH1}")
    a("s_cselect_b32 s28, s12, s10")
    a("s_cselect_b32 s29, s13, s11")
    a(f"s_mov_b32 s30, {145*128}")
    a(f"s_cselect_b32 s30, {128*128}, s30")
    a("s_and_b32 s29, s29, 0xffff")
    a("s_mov_b32 s31, 0x20000")
    a("s_lshr_b32 s32, s2, 1")
    a("s_lshl_b32 s32, s32, 4")
    a(f"s_cmp_ge_u32 s2, {IMG_W3}")
    a("s_cselect_b32 s32, 129, s32")
    a(f"s_sub_u32 s33, s2, {IMG_WH1}")
    a("s_lshr_b32 s33, s33, 1")
    a("s_lshl_b32 s33, s33, 4")
    a(f"s_cmp_ge_u32 s2, {IMG_WH1}")
    a("s_cselect_b32 s32, s33, s32")
    a("s_lshl_b32 s32, s32, 7")
    a("s_and_b32 s33, s2, 1")
    a("s_lshl_b32 s33, s33, 6")
    a("s_add_u32 s32, s32, s33")
    a("v_and_b32 v4, 31, v1")
    a("v_lshlrev_b32 v4, 1, v4")
    a("v_add_u32 v4, s32, v4")
    a("v_lshrrev_b32 v5, 5, v1")
    a(f"s_cmp_ge_u32 s2, {IMG_WH2}")
    a("s_cbranch_scc1 K1_imgperm")
    a("v_lshl_add_u32 v4, v5, 10, v4")
    for i in range(8):
        a(f"buffer_load_ushort v{8+i}, v4, s[28:31], 0 offen offset:{i*128}")
    a("s_branch K1_imgpack")
    a("K1_imgperm:")
    a("v_lshl_add_u32 v4, v5, 9, v4")
    for i in range(8):
        a(f"buffer_load_ushort v{8+i}, v4, s[28:31], 0 offen offset:{((i&3)+8*(i>>2))*128}")
    a("K1_imgpack:")
    a("s_lshl_b32 s32, s2, 10")
    a(f"s_add_u32 s32, s32, {WS_IMG}")
    a("v_lshl_add_u32 v4, v1, 4, s32")
    a("s_waitcnt vmcnt(0)")
    for i in range(4):
        a(f"v_lshl_or_b32 v{16+i}, v{9+2*i}, 16, v{8+2*i}")
    a("buffer_store_dwordx4 v[16:19], v4, s[24:27], 0 offen")
    a("K1_init:")
    a("s_cmp_lg_u32 s3, 0")
    a("s_cbranch_scc1 K1_b1")
    for i in range(4):
        a(f"v_mov_b32 v{12+i}, 0")
    a(f"ds_write_b128 v2, v[12:15] offset:{K1_CNT}")
    a("s_waitcnt lgkmcnt(0)")
    a("K1_b1:")
    a("s_barrier")
    a("s_cmp_ge_u32 s3, 13")
    a("s_cbranch_scc1 K1_b2")
    a("s_mov_b32 s34, 42800")
    a(f"s_mov_b32 s35, {-NB}")
    a("v_mov_b32 v32, 1")
    a("v_cmp_gt_u32 s[36:37], 782, v0" if False else "v_mov_b32 v33, 782")
    a("v_cmp_gt_u32 s[36:37], v33, v0")
    a("v_mov_b32 v33, 781")
    a("v_cmp_gt_u32 s[38:39], v33, v0")
    a("v_lshlrev_b32 v33, 2, v0")
    a("s_waitcnt vmcnt(1)")
    for s in range(4):
        a(f"v_mul_u32_u24 v{12+s}, s34, v{4+s}")
        a(f"v_lshrrev_b32 v{12+s}, 22, v{12+s}")
        a(f"v_mad_i32_i24 v{4+s}, v{12+s}, s35, v{4+s}")
        a(f"v_lshlrev_b32 v{12+s}, 2, v{12+s}")
    a("s_mov_b64 exec, s[36:37]")
    a(f"ds_add_rtn_u32 v16, v12, v32 offset:{K1_CNT}")
    a("s_mov_b64 exec, s[38:39]")
    for s in range(1, 4):
        a(f"ds_add_rtn_u32 v{16+s}, v{12+s}, v32 offset:{K1_CNT}")
    a("s_mov_b64 exec, -1")
    a("s_waitcnt vmcnt(0)")
    for s in range(4):
        a(f"v_lshl_or_b32 v{8+s}, v{8+s}, 12, v33")
        if s:
            a(f"v_or_b32 v{8+s}, {s}, v{8+s}")
    a("s_waitcnt lgkmcnt(0)")
    a("K1_b2:")
    a("s_barrier")
    a("v_lshlrev_b32 v34, 4, v1")
    a(f"ds_read_b128 v[20:23], v34 offset:{K1_CNT}")
    a("s_waitcnt lgkmcnt(0)")
    for k in range(4):
        a(f"v_add_u32 v{24+k}, 3, v{20+k}")
        a(f"v_lshrrev_b32 v{24+k}, 2, v{24+k}")
    a("v_add_u32 v25, v24, v25")
    a("v_add_u32 v26, v25, v26")
    a("v_add_u32 v27, v26, v27")
    a("v_mov_b32 v35, v27")
    scan_row16(a, 35)
    a("s_nop 1")
    a("v_add_u32_dpp v35, v35, v35 row_bcast:15 row_mask:0xa bank_mask:0xf")
    a("s_nop 1")
    a("v_add_u32_dpp v35, v35, v35 row_bcast:31 row_mask:0xc bank_mask:0xf")
    a("v_sub_u32 v28, v35, v27")
    a("v_readlane_b32 s40, v35, 63")
    a("v_add_u32 v29, v28, v24")
    a("v_add_u32 v30, v28, v25")
    a("v_add_u32 v31, v28, v26")
    a(f"ds_write_b128 v34, v[28:31] offset:{K1_BASE}")
    a("s_cmp_lt_u32 s3, 13")
    a("s_cbranch_scc1 K1_place")
    a("s_cmp_lg_u32 s3, 13")
    a("s_cbranch_scc1 K1_b3")
    for k in range(4):
        a(f"v_lshl_or_b32 v{20+k}, v{20+k}, 16, v{28+k}")
    a("s_lshl_b32 s41, s2, 10")
    a("v_add_u32 v34, s41, v34")
    a(f"buffer_store_dwordx4 v[20:23], v34, s[24:27], 0 offen" + (f" offset:{WS_TAB}" if WS_TAB else ""))
    a("s_branch K1_b3")
    a("K1_place:")
    for s in range(4):
        a(f"ds_read_b32 v{12+s}, v{12+s} offset:{K1_BASE}")
    for s in range(4):
        a(f"s_waitcnt lgkmcnt({3-s})")
        a(f"v_lshl_add_u32 v{16+s}, v{12+s}, 2, v{16+s}")
        a(f"v_and_b32 v{12+s}, -4, v{16+s}")
        a(f"v_lshl_add_u32 v{20+s}, v{16+s}, 2, v{12+s}")
        a(f"v_lshl_add_u32 v{24+s}, v{12+s}, 2, v{16+s}")
    a("s_mov_b64 exec, s[36:37]")
    a(f"ds_write_b32 v20, v8 offset:{K1_STG}")
    a(f"ds_write_b8 v24, v4 offset:{K1_STG+16}")
    a("s_mov_b64 exec, s[38:39]")
    for s in range(1, 4):
        a(f"ds_write_b32 v{20+s}, v{8+s} offset:{K1_STG}")
        a(f"ds_write_b8 v{24+s}, v{4+s} offset:{K1_STG+16}")
    a("s_mov_b64 exec, -1")
    a("K1_b3:")
    a("s_waitcnt lgkmcnt(0)")
    a("s_barrier")
    a("s_mul_i32 s41, s40, 20")
    a("s_add_u32 s41, s41, 15")
    a("s_lshr_b32 s41, s41, 4")
    a(f"s_mul_i32 s42, s2, {REC_STRIDE}")
    a(f"s_add_u32 s42, s42, {WS_REC}")
    a(f"ds_read_b128 v[4:7], v2 offset:{K1_STG}")
    a(f"ds_read_b128 v[8:11], v2 offset:{K1_STG+16384}")
    a("v_add_u32 v3, s42, v2")
    a("v_add_u32 v12, 0x400, v0")
    a("v_cmp_gt_u32 s[36:37], s41, v0")
    a("v_cmp_gt_u32 s[38:39], s41, v12")
    a(f"v_mov_b32 v13, {OOB}")
    a("v_add_u32 v12, 0x4000, v3")
    a("v_cndmask_b32 v3, v13, v3, s[36:37]")
    a("v_cndmask_b32 v12, v13, v12, s[38:39]")
    st = cfg.get("k1_store", "")
    a("s_waitcnt lgkmcnt(1)")
    a(f"buffer_store_dwordx4 v[4:7], v3, s[24:27], 0 offen {st}")
    a("s_cmp_ge_u32 s3, 4")
    a("s_cbranch_scc1 K1_end")
    a("s_waitcnt lgkmcnt(0)")
    a(f"buffer_store_dwordx4 v[8:11], v12, s[24:27], 0 offen {st}")
    a("K1_end:")
    a("s_endpgm")
    return a.text(), desc("sort_kernel", 40, 48)


L_STG = 0x00000
L_LIST = 0x10000
L_SB = 0x1C000
L_WH = 0x20000
L_W2 = 0x25000
L_CNT = 0x27000
L_FLAG = 0x27040
L_T = 0x27080
K2_LDS = 0x28000
CAP_TILES = 128

S_H, S_POS, S_EA, S_WS, S_OUT, S_WE, S_WX = 16, 20, 24, 28, 32, 36, 40
S_WAVE, S_B, S_NB0, S_NN = 3, 44, 45, 46
S_CLO, S_CN, S_SB, S_FIRST = 47, 48, 49, 50
S_NT, S_STG, S_TMP, S_TMP2 = 51, 52, 53, 54
S_C128, S_M32, S_TB, S_FLAG = 55, 56, 57, 58
S_LOG = 60
S_HIM = 62
S_MASK = 64
S_X = 80
S_NB6 = 82
S_LO16 = 84
S_HI16 = 86

V_ZERO = 0
V_CH0, V_CH1 = 1, 2
V_HA = 3
V_W2, V_SROW, V_STR, V_HF16, V_LG, V_LE = 7, 8, 9, 10, 11, 12
V_J, V_S0, V_S1 = 13, 14, 15
V_G4 = 16
V_N0, V_N1, V_N2, V_T = 20, 21, 22, 23
V_EA = 24
T0, T1, T2, T3, T4 = 28, 32, 36, 40, 44
PRE0, PRE1 = 48, 64
V_W3, V_XB = 80, 88
ACC0, ACC1 = 96, 112


def mfma(a, d, x, y, c):
    cs = "0" if c is None else vr(c, 16)
    a(f"v_mfma_f32_32x32x16_bf16 {vr(d,16)}, {vr(x,4)}, {vr(y,4)}, {cs}")


def silu8(a, x, t, inter=None):
    inter = list(inter or [])

    def slot():
        if inter:
            a(inter.pop(0))
    for i in range(0, 8, 2):
        a(f"v_pk_mul_f32 {vr(t+i,2)}, {vr(x+i,2)}, s[{S_LOG}:{S_LOG+1}]")
    slot()
    for i in range(8):
        a(f"v_exp_f32 v{t+i}, v{t+i}")
    for i in range(0, 8, 2):
        a(f"v_pk_add_f32 {vr(t+i,2)}, {vr(t+i,2)}, 1.0 op_sel_hi:[1,0]")
    slot()
    for i in range(8):
        a(f"v_rcp_f32 v{t+i}, v{t+i}")
    for i in range(0, 8, 2):
        a(f"v_pk_mul_f32 {vr(x+i,2)}, {vr(x+i,2)}, {vr(t+i,2)}")
    for i in range(4):
        a(f"v_cvt_pk_bf16_f32 v{x+i}, v{x+2*i}, v{x+2*i+1}")
    while inter:
        slot()


def issue_tile_loads(a, cfg):
    for q in range(4):
        a(f"v_mad_u32_u16 v{V_G4+q}, v{V_G4+q}, s{S_C128}, v{V_CH1 if q & 1 else V_CH0}")
    a(f"v_and_or_b32 v{V_T}, v{V_N0}, s{S_M32}, v{V_HF16}")
    for q in range(4):
        a(f"s_add_u32 m0, s{S_STG}, {q*1024}" if q else f"s_mov_b32 m0, s{S_STG}")
        if q == 0:
            a(f"buffer_load_dwordx4 {vr(V_EA,4)}, v{V_T}, s[{S_EA}:{S_EA+3}], 0 offen {cfg.get('ea_flag','nt')}")
        else:
            a("s_nop 0")
        a(f"buffer_load_dwordx4 v{V_G4+q}, s[{S_H}:{S_H+3}], 0 offen lds")


def k2(cfg):
    a = Asm()
    a("edge_kernel:")
    a("s_cmp_ge_u32 s2, 256")
    a("s_cbranch_scc1 K2_end")
    a("s_load_dwordx2 s[4:5], s[0:1], 0")
    a("s_load_dwordx2 s[6:7], s[0:1], 8")
    a("s_load_dwordx2 s[8:9], s[0:1], 16")
    a("s_load_dwordx2 s[10:11], s[0:1], 80")
    a("s_load_dwordx2 s[12:13], s[0:1], 64")
    a("s_load_dwordx2 s[14:15], s[0:1], 40")
    a("s_load_dwordx2 s[80:81], s[0:1], 48")
    a("v_lshrrev_b32 v1, 6, v0")
    a("v_and_b32 v23, 63, v0")
    a(f"v_readfirstlane_b32 s{S_WAVE}, v1")
    a(f"s_and_b32 s{S_B}, s2, 7")
    a(f"s_lshl_b32 s{S_B}, s{S_B}, 5")
    a(f"s_lshr_b32 s{S_TMP}, s2, 3")
    a(f"s_add_u32 s{S_B}, s{S_B}, s{S_TMP}")
    a(f"s_mul_i32 s{S_NB0}, s{S_B}, {NB}")
    a(f"s_sub_u32 s{S_NN}, {N}, s{S_NB0}")
    a(f"s_min_u32 s{S_NN}, s{S_NN}, {NB}")
    a(f"s_mul_i32 s{S_NB6}, s{S_NB0}, 6")
    a(f"s_mov_b32 s{S_CLO}, 0")
    a(f"s_mov_b32 s{S_CN}, 256")
    a(f"s_mov_b32 s{S_SB}, 0")
    a(f"s_mov_b32 s{S_FIRST}, 1")
    a(f"s_mov_b32 s{S_C128}, 128")
    a(f"s_mov_b32 s{S_M32}, 0xffffffe0")
    a(f"s_mov_b32 s{S_TB}, {L_T}")
    a(f"s_mov_b32 s{S_LOG}, 0xbfb8aa3b")
    a(f"s_mov_b32 s{S_LOG+1}, 0xbfb8aa3b")
    a(f"s_mov_b32 s{S_HIM}, 0")
    a(f"s_mov_b32 s{S_HIM+1}, -1")
    a(f"s_mov_b64 s[{S_LO16}:{S_LO16+1}], 0xffff")
    a(f"s_mov_b32 s{S_HI16}, 0xffff0000")
    a(f"s_mov_b32 s{S_HI16+1}, 0")
    a(f"s_lshl_b32 s{S_STG}, s{S_WAVE}, 12")
    a("s_waitcnt lgkmcnt(0)")
    a.srd(S_H, 4, N * 128)
    a.srd(S_POS, 6, N * 6)
    a.srd(S_EA, 8, E * 32)
    a.srd(S_WS, 10, WS_SIZE)
    a.srd(S_OUT, 12, N * 134)
    a.srd(S_WE, 14, 145 * 128)
    a.srd(S_WX, 80, 128)
    LANE = 23
    a(f"v_lshrrev_b32 v{V_HF16}, 5, v{LANE}")
    a(f"v_lshlrev_b32 v{V_HF16}, 4, v{V_HF16}")
    a(f"v_lshrrev_b32 v28, 4, v{LANE}")
    a(f"v_and_b32 v29, 7, v{LANE}")
    a(f"v_xor_b32 v28, v28, v29")
    a(f"v_lshlrev_b32 v{V_CH0}, 4, v28")
    a(f"v_xor_b32 v{V_CH1}, 64, v{V_CH0}")
    a(f"v_and_b32 v28, 31, v{LANE}")
    a(f"v_bfe_u32 v29, v28, 1, 3")
    a(f"v_lshlrev_b32 v29, 4, v29")
    a(f"v_xor_b32 v29, v29, v{V_HF16}")
    a(f"v_lshl_add_u32 v29, v28, 7, v29")
    a(f"v_add_u32 v{V_HA}, s{S_STG}, v29")
    for s in range(1, 4):
        a(f"v_xor_b32 v{V_HA+s}, {32*s}, v{V_HA}")
    a(f"v_lshlrev_b32 v{V_W2}, 4, v{LANE}")
    a(f"v_add_u32 v{V_W2}, {L_W2}, v{V_W2}")
    a(f"s_lshl_b32 s{S_TMP}, s{S_WAVE}, 10")
    a(f"s_add_u32 s{S_TMP}, s{S_TMP}, {L_SB}")
    a(f"v_and_b32 v29, 15, v{LANE}")
    a(f"v_lshlrev_b32 v29, 6, v29")
    a(f"v_add_u32 v{V_SROW}, s{S_TMP}, v29")
    a(f"v_bfe_u32 v29, v{LANE}, 2, 2")
    a(f"v_lshlrev_b32 v29, 6, v29")
    a(f"v_lshl_add_u32 v29, v{V_HF16}, 4, v29")
    a(f"v_bfe_u32 v30, v{LANE}, 4, 1")
    a(f"v_lshl_add_u32 v29, v30, 5, v29")
    a(f"v_and_b32 v30, 3, v{LANE}")
    a(f"v_lshl_add_u32 v29, v30, 3, v29")
    a(f"v_add_u32 v{V_STR}, s{S_TMP}, v29")
    a(f"v_mov_b32 v27, v0")
    a(f"v_mov_b32 v{V_ZERO}, 0")
    TID = 27
    a("s_branch K2_batch0")

    a("K2_batch:")
    a("s_barrier")
    a(f"v_mbcnt_lo_u32_b32 v{LANE}, -1, 0")
    a(f"v_mbcnt_hi_u32_b32 v{LANE}, -1, v{LANE}")
    a(f"s_lshl_b32 s{S_TMP}, s{S_WAVE}, 6")
    a(f"v_add_u32 v{TID}, s{S_TMP}, v{LANE}")
    a("K2_batch0:")
    a(f"v_lshrrev_b32 v28, 2, v{TID}")
    a(f"v_lshlrev_b32 v28, 10, v28")
    a(f"s_lshl_b32 s{S_TMP}, s{S_B}, 2")
    a(f"v_add_u32 v28, s{S_TMP}, v28")
    a(f"buffer_load_dword v26, v28, s[{S_WS}:{S_WS+3}], 0 offen" + (f" offset:{WS_TAB}" if WS_TAB else ""))
    nv = 0
    a(f"s_lshl_b32 s{S_TMP}, s{S_WAVE}, 10")
    a(f"s_add_u32 s{S_TMP}, s{S_TMP}, {WS_IMG + IMG_WH1*1024}")
    a(f"v_lshlrev_b32 v25, 4, v{LANE}")
    a(f"buffer_load_dwordx4 {vr(T4,4)}, v25, s[{S_WS}:{S_WS+3}], s{S_TMP} offen")
    nv += 1
    a(f"s_cmp_lg_u32 s{S_WAVE}, 0")
    a("s_cbranch_scc1 K2_noinit")
    a(f"v_lshrrev_b32 v28, 2, v{LANE}")
    a(f"v_and_b32 v29, 3, v{LANE}")
    a(f"v_lshrrev_b32 v30, 1, v28")
    a(f"v_cmp_eq_u32 vcc, v29, v30")
    a(f"v_and_b32 v30, 1, v28")
    a(f"v_lshlrev_b32 v30, 4, v30")
    a(f"v_mov_b32 v31, 0x3f80")
    a(f"v_lshlrev_b32 v30, v30, v31")
    a(f"v_cndmask_b32 v30, 0, v30, vcc")
    a(f"v_cmp_gt_u32 vcc, 7, v28")
    a(f"v_lshlrev_b32 v29, 2, v{LANE}")
    a(f"v_add_u32 v29, {L_CNT}, v29")
    a(f"v_cndmask_b32 v30, 0, v30, vcc")
    a("s_mov_b64 exec, 0xffffffff")
    a(f"ds_write_b32 v29, v{V_ZERO}")
    a(f"ds_write_b32 v29, v30 offset:{L_T-L_CNT}")
    a("s_mov_b64 exec, -1")
    a("K2_noinit:")
    a(f"s_cmp_eq_u32 s{S_FIRST}, 0")
    a("s_cbranch_scc1 K2_notfirst1")
    a(f"s_mov_b32 s{S_TMP}, {WS_IMG}")
    for o in range(8):
        if o * 1024 < 4096:
            a(f"buffer_load_dwordx4 {vr(ACC0+4*o,4)}, v25, s[{S_WS}:{S_WS+3}], s{S_TMP} offen offset:{o*1024}")
        else:
            if o == 4:
                a(f"s_mov_b32 s{S_TMP2}, {WS_IMG+4096}")
            a(f"buffer_load_dwordx4 {vr(ACC0+4*o,4)}, v25, s[{S_WS}:{S_WS+3}], s{S_TMP2} offen offset:{(o-4)*1024}")
    a(f"s_mov_b32 s{S_TMP}, {WS_IMG + IMG_W3*1024}")
    a(f"buffer_load_dwordx4 {vr(V_W3,4)}, v25, s[{S_WS}:{S_WS+3}], s{S_TMP} offen")
    a(f"buffer_load_dwordx4 {vr(V_W3+4,4)}, v25, s[{S_WS}:{S_WS+3}], s{S_TMP} offen offset:1024")
    a(f"v_and_b32 v28, 3, v{LANE}")
    a(f"v_bfe_u32 v29, v{LANE}, 3, 1")
    a(f"v_lshl_add_u32 v28, v29, 2, v28")
    a(f"s_add_u32 s{S_TMP2}, s{S_NB0}, s{S_WAVE}")
    a(f"v_lshl_add_u32 v28, v28, 4, s{S_TMP2}")
    a(f"v_lshl_add_u32 v24, v28, 7, v{V_HF16}")
    for s in range(4):
        a(f"buffer_load_dwordx4 {vr(T0+4*s,4)}, v24, s[{S_H}:{S_H+3}], 0 offen offset:{32*s}")
    a(f"v_and_b32 v24, 31, v{LANE}")
    a(f"v_lshlrev_b32 v24, 1, v24")
    a(f"v_lshl_add_u32 v24, v{V_HF16}, 16, v24")
    a(f"s_mov_b32 s{S_TMP2}, {128*128}")
    a(f"buffer_load_short_d16_hi v{V_XB}, v24, s[{S_WE}:{S_WE+3}], s{S_TMP2} offen")
    a(f"buffer_load_short_d16_hi v{V_XB+4}, v24, s[{S_WE}:{S_WE+3}], s{S_TMP2} offen offset:64")
    a(f"s_cmp_ge_u32 s{S_WAVE}, 8")
    a("s_cbranch_scc1 K2_notfirst1")
    a(f"s_lshl_b32 s{S_TMP}, s{S_WAVE}, 10")
    a(f"s_add_u32 m0, s{S_TMP}, {L_W2}")
    a(f"s_add_u32 s{S_TMP}, s{S_TMP}, {WS_IMG + IMG_W2*1024}")
    a(f"buffer_load_dwordx4 v25, s[{S_WS}:{S_WS+3}], s{S_TMP} offen lds")
    a("K2_notfirst1:")
    a(f"s_lshl_b32 s{S_TMP}, s{S_WAVE}, 10")
    for i in range(10):
        if i == 9:
            a(f"s_cmp_ge_u32 s{S_WAVE}, 3")
            a("s_cbranch_scc1 K2_posdone")
        a(f"s_mov_b32 m0, s{S_TMP}")
        a("s_nop 0")
        a(f"buffer_load_dwordx4 v25, s[{S_POS}:{S_POS+3}], s{S_TMP} offen lds")
        a(f"s_add_u32 s{S_TMP}, s{S_TMP}, 16384")
    a("K2_posdone:")
    a(f"s_cmp_eq_u32 s{S_FIRST}, 0")
    a("s_cbranch_scc1 K2_wt10")
    a("s_waitcnt vmcnt(26)")
    a("s_branch K2_wtdone")
    a("K2_wt10:")
    a("s_waitcnt vmcnt(10)")
    a("K2_wtdone:")
    a(f"v_lshrrev_b32 v24, 2, v{TID}")
    a(f"v_subrev_u32 v25, s{S_CLO}, v24")
    a(f"v_cmp_gt_u32 vcc, s{S_CN}, v25")
    a(f"v_lshrrev_b32 v25, 16, v26")
    a(f"v_and_b32 v26, 0xffff, v26")
    a(f"v_cndmask_b32 v25, 0, v25, vcc")
    a(f"v_subrev_u32 v25, s{S_SB}, v25")
    a(f"v_and_b32 v20, 3, v{TID}")
    a(f"s_lshr_b32 s{S_TMP}, s{S_SB}, 2")
    a(f"v_add3_u32 v26, v26, v20, s{S_TMP}")
    a(f"v_mul_u32_u24 v26, 20, v26")
    a(f"s_mov_b32 s{S_TMP}, {REC_STRIDE}")
    a(f"v_mad_u32_u24 v26, v24, s{S_TMP}, v26")
    a(f"v_add_u32 v26, {WS_REC}, v26")
    a(f"v_cmp_lt_i32 s[{S_X}:{S_X+1}], 32, v25")
    a(f"v_lshlrev_b32 v20, 2, v20")
    a(f"v_sub_u32 v25, v25, v20")
    for e in range(8):
        a(f"v_cmp_lt_i32 s[{S_MASK+2*e}:{S_MASK+2*e+1}], {16*(e>>2) + (e&3)}, v25")
    a(f"s_mov_b32 s{S_TMP}, 100000")
    a(f"v_mul_u32_u24 v{V_J}, s{S_TMP}, v24")
    a(f"v_mov_b32 v20, {OOB}")
    a(f"v_cndmask_b32 v21, v20, v26, s[{S_MASK}:{S_MASK+1}]")
    a(f"v_cndmask_b32 v22, v20, v26, s[{S_MASK+8}:{S_MASK+9}]")
    a(f"buffer_load_dwordx4 v[16:19], v21, s[{S_WS}:{S_WS+3}], 0 offen")
    a(f"buffer_load_dword v24, v21, s[{S_WS}:{S_WS+3}], 0 offen offset:16")
    a(f"buffer_load_dword v25, v22, s[{S_WS}:{S_WS+3}], 0 offen offset:96")
    a(f"buffer_load_dwordx4 v[20:23], v22, s[{S_WS}:{S_WS+3}], 0 offen offset:80")
    npf = cfg.get("pf", 0)
    if npf:
        a(f"s_cmp_ge_u32 s{S_WAVE}, {npf}")
        a("s_cbranch_scc1 K2_nopf")
        a(f"s_lshr_b32 s{S_TMP}, s2, 3")
        a(f"s_mul_i32 s{S_TMP}, s{S_TMP}, {782*128}")
        a(f"v_lshlrev_b32 v26, 7, v{TID}")
        a(f"buffer_load_dword v{TID}, v26, s[{S_H}:{S_H+3}], s{S_TMP} offen")
        a("K2_nopf:")
    a(f"s_cmp_eq_u64 s[{S_X}:{S_X+1}], 0")
    a(f"s_cselect_b32 s{S_FLAG}, 0, 1")
    a(f"s_cmp_eq_u32 s{S_FIRST}, 0")
    a("s_cbranch_scc1 K2_notfirst2")
    a("s_waitcnt vmcnt(13)")
    for s in range(4):
        mfma(a, PRE0, T0 + 4 * s, ACC0 + 8 * s, None if s == 0 else PRE0)
        mfma(a, PRE1, T0 + 4 * s, ACC0 + 8 * s + 4, None if s == 0 else PRE1)
    a("s_nop 7")
    a("s_nop 3")
    for nt, P in enumerate((PRE0, PRE1)):
        XB = V_XB + 4 * nt
        a(f"v_mov_b32 v{T0}, v{XB}")
        for k in range(4):
            a(f"v_cvt_pk_bf16_f32 v{XB+k}, v{P+2*k}, v{P+2*k+1}")
            a(f"v_lshlrev_b32 v{T0+1}, 16, v{XB+k}")
            a(f"v_and_b32 v{T0+2}, 0xffff0000, v{XB+k}")
            a(f"v_sub_f32 v{T0+1}, v{P+2*k}, v{T0+1}")
            a(f"v_sub_f32 v{T0+2}, v{P+2*k+1}, v{T0+2}")
            a(f"v_cvt_pk_bf16_f32 v{T0+1}, v{T0+1}, v{T0+2}")
            a(f"v_cndmask_b32 v{XB+k}, v{XB+k}, v{T0+1}, s[{S_HIM}:{S_HIM+1}]")
        a(f"v_and_b32 v{XB+3}, 0xffff, v{XB+3}")
        a(f"v_or_b32 v{XB+3}, v{XB+3}, v{T0}")
    for i in range(32):
        a(f"v_mov_b32 v{ACC0+i}, 0")
    a("K2_notfirst2:")
    if npf:
        a(f"s_cmp_ge_u32 s{S_WAVE}, {npf}")
        a("s_cbranch_scc1 K2_w0")
        a("s_waitcnt vmcnt(1) lgkmcnt(0)")
        a("s_branch K2_w1")
        a("K2_w0:")
    a("s_waitcnt vmcnt(0) lgkmcnt(0)")
    if npf:
        a("K2_w1:")
    a("s_barrier")
    a(f"s_cmp_eq_u32 s{S_FLAG}, 0")
    a("s_cbranch_scc1 K2_noflag")
    a(f"v_mov_b32 v28, {L_FLAG}")
    a(f"v_mov_b32 v29, 1")
    a("ds_write_b32 v28, v29")
    a("K2_noflag:")
    a(f"v_mov_b32 v{V_S0}, 1")
    a(f"s_mov_b32 s{S_TMP}, {L_CNT}")
    for g in range(2):
        A, B = 16 + 4 * g, 24 + g
        if g == 1:
            a(f"s_cmp_eq_u64 s[{S_MASK+8}:{S_MASK+9}], 0")
            a("s_cbranch_scc1 K2_g1skip")
        for s in range(4):
            e = 4 * g + s
            E0, E1, E2, RK = PRE0 + e, PRE0 + 8 + e, PRE1 + e, PRE1 + 8 + e
            a(f"v_bfe_u32 v{E1}, v{B}, {8*s}, 8")
            a(f"v_lshrrev_b32 v{E2}, 12, v{A+s}")
            a(f"v_and_b32 v{E0}, 0xfff, v{A+s}")
            a(f"v_lshl_add_u32 v{E0}, v{E0}, 5, v{V_J}")
            a(f"v_and_b32 v{A+s}, 15, v{E1}")
            a(f"v_lshl_add_u32 v{A+s}, v{A+s}, 2, s{S_TMP}")
            a(f"v_mul_u32_u24 v{T0+4*s}, 6, v{E2}")
            a(f"v_mad_u32_u24 v{T0+4*s+2}, v{E1}, 6, s{S_NB6}")
            a(f"v_lshrrev_b32 v{E1}, 2, v{E1}")
            a(f"v_and_or_b32 v{E0}, v{E1}, 28, v{E0}")
            a(f"s_mov_b64 exec, s[{S_MASK+2*e}:{S_MASK+2*e+1}]")
            a.dsop(f"ds_add_rtn_u32 v{RK}, v{A+s}, v{V_S0}", f"rk{e}")
            a.dsop(f"ds_read_b64 {vr(T0+4*s,2)}, v{T0+4*s}", f"ps{e}")
            a.dsop(f"ds_read_b64 {vr(T0+4*s+2,2)}, v{T0+4*s+2}", f"pd{e}")
            a("s_mov_b64 exec, -1")
        for s in range(4):
            e = 4 * g + s
            E0, E1, E2, RK = PRE0 + e, PRE0 + 8 + e, PRE1 + e, PRE1 + 8 + e
            ps, pd = T0 + 4 * s, T0 + 4 * s + 2
            a.wait_ds(f"pd{e}")
            a(f"v_lshlrev_b32 v{ps+1}, 16, v{ps+1}")
            a(f"v_lshlrev_b32 v{pd+1}, 16, v{pd+1}")
            a(f"v_sub_f32 v{pd+1}, v{pd+1}, v{ps+1}")
            a(f"v_and_b32 v{ps+1}, 0xffff0000, v{ps}")
            a(f"v_and_b32 v{E1}, 0xffff0000, v{pd}")
            a(f"v_sub_f32 v{E1}, v{E1}, v{ps+1}")
            a(f"v_lshlrev_b32 v{ps}, 16, v{ps}")
            a(f"v_lshlrev_b32 v{pd}, 16, v{pd}")
            a(f"v_sub_f32 v{pd}, v{pd}, v{ps}")
            a(f"v_cvt_pk_bf16_f32 v{E1}, v{E1}, v{pd+1}")
            a(f"v_cvt_pk_bf16_f32 v{pd}, 0, v{pd}")
            a(f"v_or_b32 v{E2}, v{E2}, v{pd}")
    a("K2_g1skip:")
    a("s_waitcnt lgkmcnt(0)")
    a("s_barrier")
    a(f"v_mbcnt_lo_u32_b32 v26, -1, 0")
    a(f"v_mbcnt_hi_u32_b32 v26, -1, v26")
    a(f"v_and_b32 v28, 15, v26")
    a(f"v_lshl_add_u32 v28, v28, 2, s{S_TMP}")
    a(f"v_mov_b32 v29, {L_FLAG}")
    a("ds_read_b32 v30, v28")
    a("ds_read_b32 v31, v29")
    a(f"v_lshlrev_b32 v32, 4, v26")
    a(f"s_lshl_b32 s{S_TMP2}, s{S_WAVE}, 10")
    a(f"v_add_u32 v32, s{S_TMP2}, v32")
    a(f"v_add_u32 v33, {L_WH}, v32")
    a(f"v_add_u32 v32, {L_SB}, v32")
    for i in range(4):
        a(f"v_mov_b32 v{36+i}, 0")
    a(f"ds_write_b128 v33, {vr(T4,4)}")
    a(f"ds_write_b128 v32, v[36:39]")
    a("s_waitcnt lgkmcnt(2)")
    a(f"v_add_u32 v34, 31, v30")
    a(f"v_lshrrev_b32 v34, 5, v34")
    a(f"v_mov_b32 v35, v34")
    a(f"v_readfirstlane_b32 s{S_FLAG}, v31")
    scan_row16(a, 35)
    a("v_sub_u32 v28, v35, v34")
    a(f"v_readlane_b32 s{S_TMP}, v35, 15")
    a(f"v_lshlrev_b32 v28, 7, v28")
    a(f"v_add_u32 v28, {L_LIST}, v28")
    a(f"v_readlane_b32 s{S_NT}, v34, s{S_WAVE}")
    a(f"v_readlane_b32 s{S_X}, v30, s{S_WAVE}")
    a(f"v_readlane_b32 s{S_X+1}, v28, s{S_WAVE}")
    a(f"s_cmp_lg_u32 s{S_CN}, 256")
    a("s_cbranch_scc1 K2_fits")
    a(f"s_cmp_gt_u32 s{S_TMP}, {CAP_TILES}")
    a(f"s_cselect_b32 s{S_TMP}, 1, s{S_FLAG}")
    a(f"s_cmp_eq_u32 s{S_TMP}, 0")
    a("s_cbranch_scc1 K2_fits")
    a(f"s_mov_b32 s{S_CN}, 64")
    a(f"s_mov_b32 s{S_FIRST}, 0")
    a("s_waitcnt vmcnt(0) lgkmcnt(0)")
    a("s_branch K2_batch")
    a("K2_fits:")
    for g in range(2):
        A = 16 + 4 * g
        if g == 1:
            a(f"s_cmp_eq_u64 s[{S_MASK+8}:{S_MASK+9}], 0")
            a("s_cbranch_scc1 K2_g1skip2")
        for s in range(4):
            a.dsop(f"ds_bpermute_b32 v{A+s}, v{A+s}, v28", f"bp{4*g+s}")
        for s in range(4):
            e = 4 * g + s
            E0, E1, E2, RK = PRE0 + e, PRE0 + 8 + e, PRE1 + e, PRE1 + 8 + e
            a.wait_ds(f"bp{e}")
            a(f"v_lshl_add_u32 v{RK}, v{RK}, 2, v{A+s}")
            a(f"s_mov_b64 exec, s[{S_MASK+2*e}:{S_MASK+2*e+1}]")
            a.dsop(f"ds_write_b32 v{RK}, v{E0}")
            a.dsop(f"ds_write_b32 v{RK}, v{E1} offset:16384")
            a.dsop(f"ds_write_b32 v{RK}, v{E2} offset:32768")
            a("s_mov_b64 exec, -1")
    a("K2_g1skip2:")
    a(f"v_add_u32 v29, s{S_X}, v26")
    a(f"s_lshl_b32 s{S_TMP}, s{S_NT}, 5")
    a(f"v_cmp_gt_u32 vcc, s{S_TMP}, v29")
    a(f"v_lshlrev_b32 v29, 2, v29")
    a(f"v_add_u32 v29, s{S_X+1}, v29")
    a(f"v_mov_b32 v30, {OOB | 28}")
    a(f"v_mov_b32 v31, 0xffff")
    a("s_and_b64 exec, vcc, exec")
    a("ds_write_b32 v29, v30")
    a(f"ds_write_b32 v29, v{V_ZERO} offset:16384")
    a("ds_write_b32 v29, v31 offset:32768")
    a("s_mov_b64 exec, -1")
    a(f"v_lshrrev_b32 v{V_LG}, 3, v26")
    a(f"v_lshlrev_b32 v{V_LG}, 4, v{V_LG}")
    a(f"v_add_u32 v{V_LG}, s{S_X+1}, v{V_LG}")
    a(f"v_and_b32 v29, 7, v26")
    a(f"v_bfe_u32 v30, v26, 3, 2")
    a(f"v_lshl_add_u32 v29, v29, 2, v30")
    a(f"v_lshlrev_b32 v29, 2, v29")
    a(f"v_add_u32 v{V_LE}, s{S_X+1}, v29")
    a("s_waitcnt lgkmcnt(0)")
    a("s_barrier")
    a(f"s_cmp_eq_u32 s{S_NT}, 0")
    a("s_cbranch_scc1 K2_tilesdone")
    a(f"ds_read_b128 {vr(V_G4,4)}, v{V_LG} offset:32768")
    a(f"ds_read_b32 v{V_N0}, v{V_LE}")
    a(f"ds_read_b32 v{V_S1}, v{V_LE} offset:16384")
    a(f"ds_read_b32 v{V_S0}, v{V_LE} offset:32768")
    a("s_waitcnt lgkmcnt(0)")
    issue_tile_loads(a, cfg)
    a(f"v_and_b32 v{V_J}, 31, v{V_N0}")

    a(".p2align 3" if False else "")
    a("K2_tile:")
    a.ds = []
    a(f"v_lshl_add_u32 v{V_T}, v{V_J}, 2, s{S_TB}")
    a.dsop(f"ds_read_b128 {vr(T4,4)}, v{V_T}", "xa")
    a.dsop(f"ds_read_b128 {vr(V_G4,4)}, v{V_LG} offset:{32768+128}", "g4")
    a.dsop(f"ds_read_b32 v{V_N0}, v{V_LE} offset:128", "n0")
    a.dsop(f"ds_read_b32 v{V_N1}, v{V_LE} offset:{16384+128}", "n1")
    a.dsop(f"ds_read_b32 v{V_N2}, v{V_LE} offset:{32768+128}", "n2")
    a.dsop(f"ds_read_b128 {vr(T1,4)}, v{V_W2}", "b00")
    a.dsop(f"ds_read_b128 {vr(T2,4)}, v{V_W2} offset:1024", "b01")
    t = T0
    a(f"v_and_b32 v{t}, 0xffff0000, v{V_S0}")
    a(f"v_lshlrev_b32 v{t+1}, 16, v{V_S1}")
    a(f"v_and_b32 v{t+2}, 0xffff0000, v{V_S1}")
    a(f"v_or_b32 v{V_S0}, 0x3f80, v{t}")
    for i in range(3):
        a(f"v_mul_f32 v{t+i}, v{t+i}, v{t+i}")
    for i in range(3):
        a(f"v_cvt_pk_bf16_f32 v{t+i}, 0, v{t+i}")
    a(f"v_add_f32 v{t}, v{t}, v{t+1}")
    a(f"v_add_f32 v{t}, v{t}, v{t+2}")
    a(f"v_cvt_pk_bf16_f32 v{V_T}, 0, v{t}")
    a(f"v_lshl_add_u32 v{V_J}, v{V_J}, 1, v{V_SROW}")
    a(f"v_add_u32 v{V_LG}, 128, v{V_LG}")
    a(f"v_add_u32 v{V_LE}, 128, v{V_LE}")
    a.wait_ds("xa")
    a(f"v_or_b32 v{T4+3}, v{T4+3}, v{V_T}")
    a("s_waitcnt vmcnt(0)")
    a.dsop(f"ds_read_b128 {vr(T0,4)}, v{V_HA}", "a0")
    a.dsop(f"ds_read_b128 {vr(T3,4)}, v{V_HA+1}", "a1")
    mfma(a, PRE0, T4, V_XB, None)
    mfma(a, PRE1, T4, V_XB + 4, None)
    mfma(a, PRE0, V_EA, V_W3, PRE0)
    mfma(a, PRE1, V_EA, V_W3 + 4, PRE1)
    a.dsop(f"ds_read_b128 {vr(T4,4)}, v{V_W2} offset:2048", "b10")
    a.wait_ds("a0")
    mfma(a, PRE0, T0, T1, PRE0)
    mfma(a, PRE1, T0, T2, PRE1)
    a.dsop(f"ds_read_b128 {vr(T1,4)}, v{V_W2} offset:3072", "b11")
    a.dsop(f"ds_read_b128 {vr(T0,4)}, v{V_HA+2}", "a2")
    a.dsop(f"ds_read_b128 {vr(T2,4)}, v{V_W2} offset:4096", "b20")
    a.wait_ds("b10")
    mfma(a, PRE0, T3, T4, PRE0)
    a.wait_ds("b11")
    mfma(a, PRE1, T3, T1, PRE1)
    a.dsop(f"ds_read_b128 {vr(T3,4)}, v{V_HA+3}", "a3")
    a.dsop(f"ds_read_b128 {vr(T4,4)}, v{V_W2} offset:5120", "b21")
    a.dsop(f"ds_read_b128 {vr(T1,4)}, v{V_W2} offset:6144", "b30")
    a.wait_ds("b20")
    mfma(a, PRE0, T0, T2, PRE0)
    a.dsop(f"ds_read_b128 {vr(T2,4)}, v{V_W2} offset:7168", "b31")
    a.wait_ds("b21")
    mfma(a, PRE1, T0, T4, PRE1)
    a.wait_ds("b30")
    mfma(a, PRE0, T3, T1, PRE0)
    a.wait_ds("b31")
    mfma(a, PRE1, T3, T2, PRE1)
    a(f"s_sub_u32 s{S_NT}, s{S_NT}, 1")
    a(f"s_cmp_eq_u32 s{S_NT}, 0")
    a("s_cbranch_scc1 K2_noissue")
    issue_tile_loads(a, cfg)
    a("K2_noissue:")
    a(f"s_mov_b64 exec, s[{S_LO16}:{S_LO16+1}]")
    a.dsop(f"ds_write_b64 v{V_J}, {vr(V_S0,2)}")
    a("s_mov_b64 exec, -1")
    a.dsop(f"ds_read_b64_tr_b16 {vr(T0,2)}, v{V_STR}", "s00")
    a.dsop(f"ds_read_b64_tr_b16 {vr(T0+2,2)}, v{V_STR} offset:512", "s01")
    a(f"s_mov_b64 exec, s[{S_LO16}:{S_LO16+1}]")
    a.dsop(f"ds_write2_b32 v{V_J}, v{V_ZERO}, v{V_ZERO} offset0:0 offset1:1")
    a(f"s_mov_b64 exec, s[{S_HI16}:{S_HI16+1}]")
    a.dsop(f"ds_write_b64 v{V_J}, {vr(V_S0,2)}")
    a("s_mov_b64 exec, -1")
    a.dsop(f"ds_read_b64_tr_b16 {vr(T1,2)}, v{V_STR}", "s10")
    a.dsop(f"ds_read_b64_tr_b16 {vr(T1+2,2)}, v{V_STR} offset:512", "s11")
    a(f"s_mov_b64 exec, s[{S_HI16}:{S_HI16+1}]")
    a.dsop(f"ds_write2_b32 v{V_J}, v{V_ZERO}, v{V_ZERO} offset0:0 offset1:1")
    a("s_mov_b64 exec, -1")

    def mf(d, x, y):
        return f"v_mfma_f32_32x32x16_bf16 {vr(d,16)}, {vr(x,4)}, {vr(y,4)}, {vr(d,16)}"
    silu8(a, PRE0, T2)
    a.wait_ds("s11")
    a(f"v_and_b32 v{V_J}, 31, v{V_N0}")
    a(f"v_mov_b32 v{V_S1}, v{V_N1}")
    a(f"v_mov_b32 v{V_S0}, v{V_N2}")
    silu8(a, PRE0 + 8, T2, [mf(ACC0, PRE0, T0)])
    silu8(a, PRE1, T2, [mf(ACC0, PRE0 + 8, T1)])
    silu8(a, PRE1 + 8, T2, [mf(ACC1, PRE1, T0)])
    a(f"s_cmp_lg_u32 s{S_NT}, 0")
    a("s_nop 0")
    a(mf(ACC1, PRE1 + 8, T1))
    a("s_cbranch_scc1 K2_tile")
    a("K2_tilesdone:")
    a(f"s_cmp_eq_u32 s{S_CN}, 256")
    a("s_cbranch_scc1 K2_epi")
    a(f"s_add_u32 s{S_SB}, s{S_SB}, 32")
    a(f"s_cmp_lg_u32 s{S_FLAG}, 0")
    a("s_cbranch_scc1 K2_nextbatch")
    a(f"s_mov_b32 s{S_SB}, 0")
    a(f"s_add_u32 s{S_CLO}, s{S_CLO}, 64")
    a(f"s_cmp_ge_u32 s{S_CLO}, 256")
    a("s_cbranch_scc1 K2_epi")
    a("K2_nextbatch:")
    a("s_waitcnt vmcnt(0) lgkmcnt(0)")
    a("s_branch K2_batch")

    a("K2_epi:")
    LN = 23
    a(f"v_mbcnt_lo_u32_b32 v{LN}, -1, 0")
    a(f"v_mbcnt_hi_u32_b32 v{LN}, -1, v{LN}")
    a(f"s_add_u32 s{S_TMP2}, s{S_NB0}, s{S_WAVE}")
    a(f"v_bfe_u32 v11, v{LN}, 2, 3")
    a(f"v_lshl_add_u32 v11, v11, 4, s{S_TMP2}")
    a(f"v_lshl_add_u32 v11, v11, 7, v{V_HF16}")
    for s in range(4):
        a(f"buffer_load_dwordx4 {vr(T0+4*s,4)}, v11, s[{S_H}:{S_H+3}], 0 offen offset:{32*s}")
    a(f"v_and_b32 v12, 31, v{LN}")
    a(f"v_add_u32 v13, s{S_WAVE}, v{V_HF16}")
    a(f"v_add_u32 v14, s{S_NB0}, v13")
    a(f"v_lshlrev_b32 v14, 7, v14")
    a(f"v_lshl_add_u32 v14, v12, 1, v14")
    a(f"v_mov_b32 v15, {OOB}")
    for q in range(4):
        a(f"v_add_u32 v20, {32*q}, v13")
        a(f"v_cmp_gt_u32 vcc, s{S_NN}, v20")
        a(f"v_add_u32 v20, {4096*q}, v14")
        a("s_nop 0")
        a(f"v_cndmask_b32 v{16+q}, v15, v20, vcc")
    for q in range(4):
        for nt in range(2):
            a(f"buffer_load_short_d16_hi v{1+2*q+nt}, v{16+q}, s[{S_H}:{S_H+3}], 0 offen offset:{64*nt}")
    a(f"v_mul_u32_u24 v20, 86, v12")
    a(f"v_lshrrev_b32 v20, 8, v20")
    a(f"v_mul_u32_u24 v21, 3, v20")
    a(f"v_sub_u32 v21, v12, v21")
    a(f"v_lshl_add_u32 v20, v20, 5, v13")
    a(f"v_cmp_gt_u32 vcc, s{S_NN}, v20")
    a(f"v_cmp_gt_u32 s[{S_X}:{S_X+1}], 12, v12")
    a(f"v_mad_u32_u24 v20, v20, 6, s{S_NB6}")
    a(f"v_lshl_add_u32 v20, v21, 1, v20")
    a(f"s_and_b64 vcc, vcc, s[{S_X}:{S_X+1}]")
    a(f"v_cndmask_b32 v22, v15, v20, vcc")
    a(f"buffer_load_short_d16_hi v9, v22, s[{S_POS}:{S_POS+3}], 0 offen")
    for nt, AC in enumerate((ACC0, ACC1)):
        for k in range(8):
            a(f"v_cvt_pk_bf16_f32 v{AC+k}, v{AC+2*k}, v{AC+2*k+1}")
    a(f"v_lshrrev_b32 v20, 1, v{V_HF16}")
    WX = [ACC0 + 8, ACC0 + 12, ACC1 + 8, ACC1 + 12]
    for s in range(4):
        a(f"buffer_load_dwordx2 {vr(WX[s],2)}, v20, s[{S_WX}:{S_WX+3}], 0 offen offset:{32*s}")
        a(f"buffer_load_dwordx2 {vr(WX[s]+2,2)}, v20, s[{S_WX}:{S_WX+3}], 0 offen offset:{32*s+16}")
    PA = [ACC0, ACC0 + 4, ACC1, ACC1 + 4]
    U3 = V_W3
    a(f"v_lshlrev_b32 v10, 4, v{LN}")
    a(f"v_add_u32 v10, {L_WH}, v10")
    a.ds = []
    BQ = [24, 44]
    seq = [(8 + 2 * s + nt, PA[s], nt) for s in range(4) for nt in range(2)] + \
          [(2 * s + nt, T0 + 4 * s, nt) for s in range(4) for nt in range(2)]
    a.dsop(f"ds_read_b128 {vr(BQ[0],4)}, v10 offset:{seq[0][0]*1024}", "w0")
    for i, (o, A, nt) in enumerate(seq):
        if i + 1 < len(seq):
            a.dsop(f"ds_read_b128 {vr(BQ[(i+1)&1],4)}, v10 offset:{seq[i+1][0]*1024}", f"w{i+1}")
        if i == 8:
            a("s_waitcnt vmcnt(0)")
            for s in range(4):
                mfma(a, U3, PA[s], WX[s], None if s == 0 else U3)
        a.wait_ds(f"w{i}")
        U = PRE1 if nt else PRE0
        mfma(a, U, A, BQ[i & 1], None if i < 2 else U)
    a(f"v_mov_b32 v21, 0")
    a("s_nop 4")
    for i in range(12):
        a(f"s_mov_b32 s{S_X}, {1 << i}")
        a(f"s_mov_b32 s{S_X+1}, {1 << i}")
        a(f"v_cndmask_b32 v21, v21, v{U3 + 4*(i//3) + 1 + i % 3}, s[{S_X}:{S_X+1}]")
    a("v_add_f32 v21, v21, v9")
    a("v_cvt_pk_bf16_f32 v21, v21, v21")
    a(f"s_mov_b32 s{S_TMP}, {N*128}")
    a(f"buffer_store_short v21, v22, s[{S_OUT}:{S_OUT+3}], s{S_TMP} offen")
    U = [(PRE1 if nt else PRE0) + 4 * q for q in range(4) for nt in range(2)]
    for i in range(8):
        a(f"v_mul_f32 v{T0+i}, s{S_LOG}, v{U[i]}")
    for i in range(8):
        a(f"v_exp_f32 v{T0+i}, v{T0+i}")
    for i in range(8):
        a(f"v_add_f32 v{T0+i}, 1.0, v{T0+i}")
    for i in range(8):
        a(f"v_rcp_f32 v{T0+i}, v{T0+i}")
    for i in range(8):
        a(f"v_fma_f32 v{1+i}, v{U[i]}, v{T0+i}, v{1+i}")
    for i in range(8):
        a(f"v_cvt_pk_bf16_f32 v{1+i}, v{1+i}, v{1+i}")
    for i in range(8):
        a(f"buffer_store_short v{1+i}, v{16+(i>>1)}, s[{S_OUT}:{S_OUT+3}], 0 offen offset:{64*(i&1)}")
    a("K2_end:")
    a("s_endpgm")
    return a.text(), desc("edge_kernel", 128, 96)


HEADER = open(os.path.join(os.path.dirname(os.path.abspath(__file__)), "header.txt")).read()


def build(cfg):
    c1, d1 = k1(cfg)
    c2, d2 = k2(cfg)
    out = HEADER
    out += f"; @launch kernel=sort_kernel grid=(256,1,1) block=(1024,1,1) lds={K1_LDS}\n"
    out += f"; @launch kernel=edge_kernel grid=(256,1,1) block=(1024,1,1) lds={K2_LDS}\n"
    out += '.amdgcn_target "amdgcn-amd-amdhsa--gfx950"\n.text\n'
    out += ".globl sort_kernel\n.p2align 8\n.type sort_kernel,@function\n" + c1
    out += ".globl edge_kernel\n.p2align 8\n.type edge_kernel,@function\n" + c2
    out += '.section .rodata,"a"\n' + d1 + d2
    return out


if __name__ == "__main__":
    cfg = {}
    outp = "gather_scatter__cheap_equivariant_egnn__graph.s"
    for arg in sys.argv[1:]:
        if "=" in arg:
            k, v = arg.split("=", 1)
            cfg[k] = int(v) if v.lstrip("-").isdigit() else v
        else:
            outp = arg
    open(outp, "w").write(build(cfg))
    print("wrote", outp)
```

```python
import sys, os

N = 25000
E = 800000
NB = 98
CH = 3125
WS_TAB = 0
WS_REC = 0x40000
REC_STRIDE = 19584
WS_IMG = 0x600000
IMG_W1, IMG_W2, IMG_W3, IMG_WH1, IMG_WH2 = 0, 8, 16, 18, 26
WS_SIZE = 268435456
OOB = 0x7FFFFFE0


class Asm:
    def __init__(self):
        self.L = []
        self.ds = []

    def __call__(self, s):
        for line in s.split("\n"):
            line = line.strip()
            if line:
                self.L.append(line if line.endswith(":") else "    " + line)

    def c(self, s):
        self.L.append("    ; " + s)

    def dsop(self, s, tag=None):
        self(s)
        self.ds.append(tag)

    def wait_ds(self, *tags):
        idx = max(len(self.ds) - 1 - self.ds[::-1].index(t) for t in tags)
        n = len(self.ds) - 1 - idx
        assert n <= 15, n
        self(f"s_waitcnt lgkmcnt({n})")

    def srd(self, d, b, n):
        self(f"s_mov_b32 s{d}, s{b}")
        self(f"s_and_b32 s{d+1}, s{b+1}, 0xffff")
        self(f"s_mov_b32 s{d+2}, {n}")
        self(f"s_mov_b32 s{d+3}, 0x20000")

    def text(self):
        return "\n".join(self.L) + "\n"


def vr(a, n=1):
    return f"v{a}" if n == 1 else f"v[{a}:{a+n-1}]"


def desc(name, vgpr, sgpr):
    return f""".p2align 6
.amdhsa_kernel {name}
  .amdhsa_next_free_vgpr {vgpr}
  .amdhsa_next_free_sgpr {sgpr}
  .amdhsa_accum_offset {(vgpr + 3) // 4 * 4}
  .amdhsa_group_segment_fixed_size 0
  .amdhsa_kernarg_size 88
  .amdhsa_user_sgpr_count 2
  .amdhsa_user_sgpr_kernarg_segment_ptr 1
  .amdhsa_system_sgpr_workgroup_id_x 1
  .amdhsa_float_denorm_mode_32 3
.end_amdhsa_kernel
"""


def stamp(a, cfg, i, real=False):
    if cfg.get("stamps"):
        a(f"s_memrealtime s[88:89]" if real else "s_memtime s[88:89]")
        a("s_waitcnt lgkmcnt(0)")
        a(f"s_mov_b32 s{90+i}, s88")


def stamp_out(a, cfg, srd, wave, off):
    if cfg.get("stamps"):
        for i in range(12):
            a(f"v_writelane_b32 v40, s{90+i}, {i}")
        a("v_mbcnt_lo_u32_b32 v41, -1, 0")
        a("v_mbcnt_hi_u32_b32 v41, -1, v41")
        a("v_lshlrev_b32 v41, 2, v41")
        a("s_lshl_b32 s88, s2, 4")
        a(f"s_add_u32 s88, s88, s{wave}")
        a("s_lshl_b32 s88, s88, 6")
        a(f"s_add_u32 s88, s88, {off}")
        a("s_mov_b64 exec, 0xffff")
        a(f"buffer_store_dword v40, v41, s[{srd}:{srd+3}], s88 offen")


def scan_row16(a, v):
    for sh in (1, 2, 4, 8):
        a("s_nop 1")
        a(f"v_add_u32_dpp v{v}, v{v}, v{v} row_shr:{sh} row_mask:0xf bank_mask:0xf bound_ctrl:0")


K1_CNT, K1_BASE, K1_STG = 0, 1024, 2048
K1_LDS = 22528


def k1(cfg):
    a = Asm()
    a("sort_kernel:")
    a("s_cmp_ge_u32 s2, 256")
    a("s_cbranch_scc1 K1_end")
    stamp(a, cfg, 0, True)
    stamp(a, cfg, 1)
    a("s_load_dwordx2 s[4:5], s[0:1], 24")
    a("s_load_dwordx2 s[6:7], s[0:1], 32")
    a("s_load_dwordx2 s[8:9], s[0:1], 80")
    a("s_load_dwordx2 s[10:11], s[0:1], 40")
    a("s_load_dwordx2 s[12:13], s[0:1], 56")
    a("v_lshrrev_b32 v1, 6, v0")
    a("v_lshlrev_b32 v2, 4, v0")
    a("v_readfirstlane_b32 s3, v1")
    a(f"s_mul_i32 s14, s2, {CH*4}")
    a("v_add_u32 v3, s14, v2")
    a("v_and_b32 v1, 63, v0")
    a("s_waitcnt lgkmcnt(0)")
    a.srd(16, 4, E * 4)
    a.srd(20, 6, E * 4)
    a.srd(24, 8, WS_SIZE)
    a("s_cmp_ge_u32 s3, 13")
    a("s_cbranch_scc1 K1_noload")
    a("buffer_load_dwordx4 v[4:7], v3, s[20:23], 0 offen nt")
    a("buffer_load_dwordx4 v[8:11], v3, s[16:19], 0 offen nt")
    a("s_branch K1_init")
    a("K1_noload:")
    a("s_cmp_lg_u32 s3, 13")
    a("s_cbranch_scc1 K1_init")
    a("s_cmp_ge_u32 s2, 34")
    a("s_cbranch_scc1 K1_init")
    a(f"s_cmp_ge_u32 s2, {IMG_WH1}")
    a("s_cselect_b32 s28, s12, s10")
    a("s_cselect_b32 s29, s13, s11")
    a(f"s_mov_b32 s30, {145*128}")
    a(f"s_cselect_b32 s30, {128*128}, s30")
    a("s_and_b32 s29, s29, 0xffff")
    a("s_mov_b32 s31, 0x20000")
    a("s_lshr_b32 s32, s2, 1")
    a("s_lshl_b32 s32, s32, 4")
    a(f"s_cmp_ge_u32 s2, {IMG_W3}")
    a("s_cselect_b32 s32, 129, s32")
    a(f"s_sub_u32 s33, s2, {IMG_WH1}")
    a("s_lshr_b32 s33, s33, 1")
    a("s_lshl_b32 s33, s33, 4")
    a(f"s_cmp_ge_u32 s2, {IMG_WH1}")
    a("s_cselect_b32 s32, s33, s32")
    a("s_lshl_b32 s32, s32, 7")
    a("s_and_b32 s33, s2, 1")
    a("s_lshl_b32 s33, s33, 6")
    a("s_add_u32 s32, s32, s33")
    a("v_and_b32 v4, 31, v1")
    a("v_lshlrev_b32 v4, 1, v4")
    a("v_add_u32 v4, s32, v4")
    a("v_lshrrev_b32 v5, 5, v1")
    a(f"s_cmp_ge_u32 s2, {IMG_WH2}")
    a("s_cbranch_scc1 K1_imgperm")
    a("v_lshl_add_u32 v4, v5, 10, v4")
    for i in range(8):
        a(f"buffer_load_ushort v{8+i}, v4, s[28:31], 0 offen offset:{i*128}")
    a("s_branch K1_imgpack")
    a("K1_imgperm:")
    a("v_lshl_add_u32 v4, v5, 9, v4")
    for i in range(8):
        a(f"buffer_load_ushort v{8+i}, v4, s[28:31], 0 offen offset:{((i&3)+8*(i>>2))*128}")
    a("K1_imgpack:")
    a("s_lshl_b32 s32, s2, 10")
    a(f"s_add_u32 s32, s32, {WS_IMG}")
    a("v_lshl_add_u32 v4, v1, 4, s32")
    a(f"s_sub_u32 s32, s2, {IMG_W2}")
    a(f"s_cmp_lt_u32 s32, {IMG_WH1 - IMG_W2}")
    a(f"s_cselect_b32 s32, {'0xbfb8aa3b' if cfg.get('scaled', 1) else '1.0'}, 1.0")
    a("s_waitcnt vmcnt(0)")
    for i in range(8):
        a(f"v_lshlrev_b32 v{8+i}, 16, v{8+i}")
        a(f"v_mul_f32 v{8+i}, s32, v{8+i}")
    for i in range(4):
        a(f"v_cvt_pk_bf16_f32 v{16+i}, v{8+2*i}, v{9+2*i}")
    a("buffer_store_dwordx4 v[16:19], v4, s[24:27], 0 offen")
    a("K1_init:")
    k1pf = cfg.get("k1pf", 0)
    if k1pf:
        a("s_load_dwordx2 s[44:45], s[0:1], 0")
        a("s_load_dwordx2 s[46:47], s[0:1], 8")
        a("s_waitcnt lgkmcnt(0)")
        a.srd(48, 44, N * 128)
        a.srd(52, 46, N * 6)
        a("s_lshr_b32 s43, s2, 3")
        a(f"s_mul_i32 s44, s43, {782*128}")
        a(f"v_mov_b32 v37, {OOB}")
        a(f"v_cmp_gt_u32 vcc, {k1pf}, v0")
        a("v_lshlrev_b32 v36, 7, v0")
        a(f"s_mul_i32 s45, s43, {37*128}")
        a("v_cndmask_b32 v38, v37, v36, vcc")
        a(f"v_cmp_gt_u32 vcc, 37, v0")
        a("buffer_load_dword v38, v38, s[48:51], s44 offen")
        a("s_nop 0")
        a("v_cndmask_b32 v39, v37, v36, vcc")
        a("s_cmp_lg_u32 s3, 0")
        a("s_cbranch_scc1 K1_nopospf")
        a("buffer_load_dword v39, v39, s[52:55], s45 offen")
        a("K1_nopospf:")
    a("s_cmp_lg_u32 s3, 0")
    a("s_cbranch_scc1 K1_b1")
    for i in range(4):
        a(f"v_mov_b32 v{12+i}, 0")
    a(f"ds_write_b128 v2, v[12:15] offset:{K1_CNT}")
    a("s_waitcnt lgkmcnt(0)")
    a("K1_b1:")
    a("s_barrier")
    a("s_cmp_ge_u32 s3, 13")
    a("s_cbranch_scc1 K1_b2")
    a("s_mov_b32 s34, 42800")
    a(f"s_mov_b32 s35, {-NB}")
    a("v_mov_b32 v32, 1")
    a("v_cmp_gt_u32 s[36:37], 782, v0" if False else "v_mov_b32 v33, 782")
    a("v_cmp_gt_u32 s[36:37], v33, v0")
    a("v_mov_b32 v33, 781")
    a("v_cmp_gt_u32 s[38:39], v33, v0")
    a("v_lshlrev_b32 v33, 7, v0")
    a("s_waitcnt vmcnt(%d)" % (2 if cfg.get("k1pf", 0) else 1))
    stamp(a, cfg, 2)
    for s in range(4):
        a(f"v_mul_u32_u24 v{12+s}, s34, v{4+s}")
        a(f"v_lshrrev_b32 v{12+s}, 22, v{12+s}")
        a(f"v_mad_i32_i24 v{4+s}, v{12+s}, s35, v{4+s}")
        a(f"v_lshlrev_b32 v{12+s}, 2, v{12+s}")
    a("s_mov_b64 exec, s[36:37]")
    a(f"ds_add_rtn_u32 v16, v12, v32 offset:{K1_CNT}")
    a("s_mov_b64 exec, s[38:39]")
    for s in range(1, 4):
        a(f"ds_add_rtn_u32 v{16+s}, v{12+s}, v32 offset:{K1_CNT}")
    a("s_mov_b64 exec, -1")
    a("s_waitcnt vmcnt(%d)" % (1 if cfg.get("k1pf", 0) else 0))
    for s in range(4):
        a(f"v_lshl_or_b32 v{8+s}, v{8+s}, 17, v33")
        a(f"v_lshrrev_b32 v34, 2, v{4+s}")
        a(f"v_and_or_b32 v{8+s}, v34, 28, v{8+s}")
        if s < 3:
            a("v_add_u32 v33, 32, v33")
    a("s_waitcnt lgkmcnt(0)")
    a("K1_b2:")
    stamp(a, cfg, 3)
    a("s_barrier")
    stamp(a, cfg, 4)
    a("v_lshlrev_b32 v34, 4, v1")
    a(f"ds_read_b128 v[20:23], v34 offset:{K1_CNT}")
    a("s_waitcnt lgkmcnt(0)")
    for k in range(4):
        a(f"v_add_u32 v{24+k}, 3, v{20+k}")
        a(f"v_lshrrev_b32 v{24+k}, 2, v{24+k}")
    a("v_add_u32 v25, v24, v25")
    a("v_add_u32 v26, v25, v26")
    a("v_add_u32 v27, v26, v27")
    a("v_mov_b32 v35, v27")
    scan_row16(a, 35)
    a("s_nop 1")
    a("v_add_u32_dpp v35, v35, v35 row_bcast:15 row_mask:0xa bank_mask:0xf")
    a("s_nop 1")
    a("v_add_u32_dpp v35, v35, v35 row_bcast:31 row_mask:0xc bank_mask:0xf")
    a("v_sub_u32 v28, v35, v27")
    a("v_readlane_b32 s40, v35, 63")
    a("v_add_u32 v29, v28, v24")
    a("v_add_u32 v30, v28, v25")
    a("v_add_u32 v31, v28, v26")
    a(f"ds_write_b128 v34, v[28:31] offset:{K1_BASE}")
    a("s_cmp_lt_u32 s3, 13")
    a("s_cbranch_scc1 K1_place")
    a("s_cmp_lg_u32 s3, 13")
    a("s_cbranch_scc1 K1_b3")
    for k in range(4):
        a(f"v_lshl_or_b32 v{20+k}, v{20+k}, 16, v{28+k}")
    a("s_lshl_b32 s41, s2, 10")
    a("v_add_u32 v34, s41, v34")
    a(f"buffer_store_dwordx4 v[20:23], v34, s[24:27], 0 offen" + (f" offset:{WS_TAB}" if WS_TAB else ""))
    a("s_branch K1_b3")
    a("K1_place:")
    for s in range(4):
        a(f"ds_read_b32 v{12+s}, v{12+s} offset:{K1_BASE}")
    for s in range(4):
        a(f"s_waitcnt lgkmcnt({3-s})")
        a(f"v_lshl_add_u32 v{16+s}, v{12+s}, 2, v{16+s}")
        a(f"v_and_b32 v{12+s}, -4, v{16+s}")
        a(f"v_lshl_add_u32 v{20+s}, v{16+s}, 2, v{12+s}")
        a(f"v_lshl_add_u32 v{24+s}, v{12+s}, 2, v{16+s}")
    a("s_mov_b64 exec, s[36:37]")
    a(f"ds_write_b32 v20, v8 offset:{K1_STG}")
    a(f"ds_write_b8 v24, v4 offset:{K1_STG+16}")
    a("s_mov_b64 exec, s[38:39]")
    for s in range(1, 4):
        a(f"ds_write_b32 v{20+s}, v{8+s} offset:{K1_STG}")
        a(f"ds_write_b8 v{24+s}, v{4+s} offset:{K1_STG+16}")
    a("s_mov_b64 exec, -1")
    a("K1_b3:")
    a("s_waitcnt lgkmcnt(0)")
    stamp(a, cfg, 5)
    a("s_barrier")
    stamp(a, cfg, 6)
    a("s_mul_i32 s41, s40, 20")
    a("s_add_u32 s41, s41, 15")
    a("s_lshr_b32 s41, s41, 4")
    a(f"s_mul_i32 s42, s2, {REC_STRIDE}")
    a(f"s_add_u32 s42, s42, {WS_REC}")
    a(f"ds_read_b128 v[4:7], v2 offset:{K1_STG}")
    a(f"ds_read_b128 v[8:11], v2 offset:{K1_STG+16384}")
    a("v_add_u32 v3, s42, v2")
    a("v_add_u32 v12, 0x400, v0")
    a("v_cmp_gt_u32 s[36:37], s41, v0")
    a("v_cmp_gt_u32 s[38:39], s41, v12")
    a(f"v_mov_b32 v13, {OOB}")
    a("v_add_u32 v12, 0x4000, v3")
    a("v_cndmask_b32 v3, v13, v3, s[36:37]")
    a("v_cndmask_b32 v12, v13, v12, s[38:39]")
    st = cfg.get("k1_store", "")
    a("s_waitcnt lgkmcnt(1)")
    a(f"buffer_store_dwordx4 v[4:7], v3, s[24:27], 0 offen {st}")
    a("s_cmp_ge_u32 s3, 4")
    a("s_cbranch_scc1 K1_fin")
    a("s_waitcnt lgkmcnt(0)")
    a(f"buffer_store_dwordx4 v[8:11], v12, s[24:27], 0 offen {st}")
    a("K1_fin:")
    if cfg.get("stamps"):
        a("s_waitcnt vmcnt(0)")
    stamp(a, cfg, 9)
    stamp(a, cfg, 10, True)
    stamp_out(a, cfg, 24, 3, 0x1100000)
    a("K1_end:")
    a("s_endpgm")
    return a.text(), desc("sort_kernel", 48 if cfg.get("stamps") else 40, 102 if cfg.get("stamps") else 56)


L_STG = 0x00000
L_LIST = 0x10000
PL = 16640
L_SB = 0x1C400
L_WH = 0x20400
L_CNT = 0x27400
L_FLAG = 0x27440
L_T = 0x27480
L_W128 = 0x27500
L_PD = 0x27600
K2_LDS = 0x28000

S_H, S_POS, S_EA, S_WS, S_OUT, S_WE, S_WX = 16, 20, 24, 28, 32, 36, 40
S_WAVE, S_B, S_NB0, S_NN = 3, 44, 45, 46
S_CLO, S_CN, S_SB, S_FIRST = 47, 48, 49, 50
S_NT, S_STG, S_TMP, S_TMP2 = 51, 52, 53, 54
S_C128, S_M32, S_TB, S_FLAG = 55, 56, 57, 58
S_EOFF, S_LOG, S_NB6 = 59, 60, 61
S_HIM = 62
S_WA, S_WB, S_NA, S_BB = 64, 65, 66, 67
S_I, S_P2, S_PD, S_SWP = 68, 69, 70, 71
S_X = 72
S_Y = 74
S_LO32 = 76

V_ZERO, V_CH0, V_CH1 = 0, 1, 2
V_HA = 3
V_SROW, V_STR, V_HF16, V_LG, V_LE, V_LANE, V_TID = 7, 8, 9, 10, 11, 12, 13
V_J = [14, 15]
V_S = [16, 18]
V_PE = [20, 21]
V_T = 22
V_G4 = 28
V_EA = [32, 36]
V_XA = 40
V_SO = 44
V_A = 52
V_TS = 68
V_W2, V_W3, V_XB, V_XB2 = 80, 112, 120, 128
PRE0, PRE1 = 136, 152
ACC0, ACC1, SAV0, SAV1 = 168, 184, 200, 216
V_WH = [76, 252]


def mfma(a, d, x, y, c):
    a(mfs(d, x, y, c))


def mfs(d, x, y, c):
    cs = "0" if c is None else vr(c, 16)
    return f"v_mfma_f32_32x32x16_bf16 {vr(d,16)}, {vr(x,4)}, {vr(y,4)}, {cs}"


def phase(a, x, slots, cfg):
    def emit(items):
        for it in items:
            if callable(it):
                it()
            elif cfg.get("novm") and (it.startswith("buffer_") or "m0" in it or it == "s_nop 0"):
                pass
            elif cfg.get("nomfma") and it.startswith("v_mfma"):
                pass
            else:
                a(it)
    for g in range(4):
        y = x + 4 * g
        t = V_TS + 4 * (g & 1)
        emit(slots[2 * g])
        if not cfg.get("nosilu"):
            for i in range(4):
                a(f"v_exp_f32 v{t+i}, v{y+i}")
            if cfg.get("scal"):
                for i in range(4):
                    a(f"v_add_f32 v{t+i}, 1.0, v{t+i}")
            else:
                for i in (0, 2):
                    a(f"v_pk_add_f32 {vr(t+i,2)}, {vr(t+i,2)}, 1.0 op_sel_hi:[1,0]")
        emit(slots[2 * g + 1])
        if not cfg.get("nosilu"):
            for i in range(4):
                a(f"v_rcp_f32 v{t+i}, v{t+i}")
            if cfg.get("scal"):
                for i in range(4):
                    a(f"v_mul_f32 v{t+i}, v{y+i}, v{t+i}")
            else:
                for i in (0, 2):
                    a(f"v_pk_mul_f32 {vr(t+i,2)}, {vr(y+i,2)}, {vr(t+i,2)}")
        d = x + 8 * (g >> 1) + 2 * (g & 1)
        a(f"v_cvt_pk_bf16_f32 v{d}, v{t}, v{t+1}")
        a(f"v_cvt_pk_bf16_f32 v{d+1}, v{t+2}, v{t+3}")


def k2(cfg):
    a = Asm()
    LANE, TID = V_LANE, V_TID
    eaf = cfg.get("ea_flag", "nt")
    a("edge_kernel:")
    a("s_cmp_ge_u32 s2, 256")
    a("s_cbranch_scc1 K2_end")
    stamp(a, cfg, 0, True)
    stamp(a, cfg, 1)
    a("s_setprio 3")
    a("s_load_dwordx2 s[10:11], s[0:1], 80")
    a("s_load_dwordx2 s[6:7], s[0:1], 8")
    a("s_load_dwordx2 s[4:5], s[0:1], 0")
    a("s_load_dwordx2 s[8:9], s[0:1], 16")
    a("s_load_dwordx2 s[12:13], s[0:1], 64")
    a("s_load_dwordx2 s[14:15], s[0:1], 40")
    a(f"s_load_dwordx2 s[{S_X}:{S_X+1}], s[0:1], 48")
    a("v_lshrrev_b32 v1, 6, v0")
    a(f"v_and_b32 v{LANE}, 63, v0")
    a(f"v_readfirstlane_b32 s{S_WAVE}, v1")
    a(f"v_mov_b32 v{TID}, v0")
    a(f"s_and_b32 s{S_B}, s2, 7")
    a(f"s_lshl_b32 s{S_B}, s{S_B}, 5")
    a(f"s_lshr_b32 s{S_TMP}, s2, 3")
    a(f"s_add_u32 s{S_B}, s{S_B}, s{S_TMP}")
    a(f"s_mul_i32 s{S_NB0}, s{S_B}, {NB}")
    a(f"s_sub_u32 s{S_NN}, {N}, s{S_NB0}")
    a(f"s_min_u32 s{S_NN}, s{S_NN}, {NB}")
    a(f"s_mul_i32 s{S_NB6}, s{S_NB0}, 6")
    a(f"s_mov_b32 s{S_CLO}, 0")
    a(f"s_mov_b32 s{S_CN}, 256")
    a(f"s_mov_b32 s{S_SB}, 0")
    a(f"s_mov_b32 s{S_FIRST}, 1")
    a(f"s_mov_b32 s{S_C128}, 128")
    a(f"s_mov_b32 s{S_M32}, 0xffffffe0")
    a(f"s_mov_b32 s{S_TB}, {L_T}")
    a(f"s_mov_b32 s{S_PD}, {L_PD}")
    a(f"s_mov_b32 s{S_LOG}, 0xbfb8aa3b")
    a(f"s_mov_b32 s{S_HIM}, 0")
    a(f"s_mov_b32 s{S_HIM+1}, -1")
    a(f"s_mov_b32 s{S_LO32}, -1")
    a(f"s_mov_b32 s{S_LO32+1}, 0")
    a(f"s_lshl_b32 s{S_STG}, s{S_WAVE}, 13")
    a(f"s_mov_b32 s{S_WA}, s{S_WAVE}")
    a(f"s_sub_u32 s{S_WB}, 15, s{S_WAVE}")
    a(f"v_mov_b32 v{V_ZERO}, 0")
    a("s_waitcnt lgkmcnt(0)")
    a.srd(S_WS, 10, WS_SIZE)
    a.srd(S_POS, 6, N * 6)
    a.srd(S_H, 4, N * 128)
    a.srd(S_EA, 8, E * 32)
    a.srd(S_OUT, 12, N * 134)
    a.srd(S_WE, 14, 145 * 128)
    a.srd(S_WX, S_X, 128)
    a("s_branch K2_batch0")

    a("K2_batch:")
    a("s_barrier")
    a(f"s_lshl_b32 s{S_TMP}, s{S_WAVE}, 6")
    a(f"v_add_u32 v{TID}, s{S_TMP}, v{LANE}")
    a("K2_batch0:")
    VT, VC, VREM, VL16, VCB = 20, 21, 76 + 0, 23, 24
    VREM = 14
    VCB = 15
    VL16 = 16
    a(f"v_lshrrev_b32 v21, 1, v{TID}")
    a(f"v_lshlrev_b32 v22, 10, v21")
    a(f"s_lshl_b32 s{S_TMP}, s{S_B}, 2")
    a(f"buffer_load_dword v20, v22, s[{S_WS}:{S_WS+3}], s{S_TMP} offen" + (f" offset:{WS_TAB}" if WS_TAB else ""))
    a(f"v_lshlrev_b32 v{VL16}, 4, v{LANE}")
    a(f"s_cmp_ge_u32 s{S_WAVE}, 2")
    a("s_cbranch_scc1 K2_nopd")
    a(f"v_mad_u32_u24 v29, v{TID}, 6, s{S_NB6}")
    for i in range(3):
        a(f"buffer_load_ushort v{30+i}, v29, s[{S_POS}:{S_POS+3}], 0 offen offset:{2*i}")
    a("K2_nopd:")
    a("s_setprio 0")
    a(f"s_lshr_b32 s{S_TMP}, s2, 3")
    a(f"s_mul_i32 s{S_TMP}, s{S_TMP}, {cfg.get('rot', 4)}")
    a(f"s_add_u32 s{S_TMP}, s{S_TMP}, s{S_WAVE}")
    a(f"s_lshl_b32 s{S_EOFF}, s{S_TMP}, 10")

    def pos_piece(first=False):
        if not first:
            a(f"s_add_u32 s{S_EOFF}, s{S_EOFF}, 8192")
        a(f"s_sub_u32 s{S_TMP}, s{S_EOFF}, {147*1024}")
        a(f"s_cselect_b32 s{S_EOFF}, s{S_EOFF}, s{S_TMP}")
        a(f"s_mov_b32 m0, s{S_EOFF}")
        a("s_nop 0")
        a(f"buffer_load_dwordx4 v{VL16}, s[{S_POS}:{S_POS+3}], s{S_EOFF} offen lds")
    NP1 = cfg.get("np1", 6)
    for i in range(NP1):
        pos_piece(i == 0)
    a(f"v_lshrrev_b32 v{V_HF16}, 5, v{LANE}")
    a(f"v_lshlrev_b32 v{V_HF16}, 4, v{V_HF16}")
    a(f"v_lshrrev_b32 v24, 4, v{LANE}")
    a(f"v_and_b32 v25, 7, v{LANE}")
    a(f"v_xor_b32 v24, v24, v25")
    a(f"v_lshlrev_b32 v{V_CH0}, 4, v24")
    a(f"v_xor_b32 v{V_CH1}, 64, v{V_CH0}")
    a(f"v_and_b32 v24, 31, v{LANE}")
    a(f"v_bfe_u32 v25, v24, 1, 3")
    a(f"v_lshlrev_b32 v25, 4, v25")
    a(f"v_xor_b32 v25, v25, v{V_HF16}")
    a(f"v_lshl_add_u32 v25, v24, 7, v25")
    a(f"v_add_u32 v{V_HA}, s{S_STG}, v25")
    for s in range(1, 4):
        a(f"v_xor_b32 v{V_HA+s}, {32*s}, v{V_HA}")
    a(f"s_lshl_b32 s{S_TMP}, s{S_WAVE}, 11")
    a(f"s_add_u32 s{S_TMP}, s{S_TMP}, {L_SB}")
    a(f"v_lshl_add_u32 v{V_SROW}, v24, 6, s{S_TMP}")
    a(f"v_bfe_u32 v25, v{LANE}, 2, 2")
    a(f"v_lshlrev_b32 v25, 6, v25")
    a(f"v_lshl_add_u32 v25, v{V_HF16}, 4, v25")
    a(f"v_bfe_u32 v26, v{LANE}, 4, 1")
    a(f"v_lshl_add_u32 v25, v26, 5, v25")
    a(f"v_and_b32 v26, 3, v{LANE}")
    a(f"v_lshl_add_u32 v25, v26, 3, v25")
    a(f"v_add_u32 v{V_STR}, s{S_TMP}, v25")
    a(f"v_lshrrev_b32 v{V_LG}, 3, v{LANE}")
    a(f"v_lshlrev_b32 v{V_LG}, 4, v{V_LG}")
    a(f"v_and_b32 v25, 7, v{LANE}")
    a(f"v_bfe_u32 v26, v{LANE}, 3, 2")
    a(f"v_lshl_add_u32 v25, v25, 2, v26")
    a(f"v_lshlrev_b32 v{V_LE}, 2, v25")
    a(f"s_cmp_lg_u32 s{S_WAVE}, 2")
    a("s_cbranch_scc1 K2_noinit")
    a(f"v_lshrrev_b32 v28, 2, v{LANE}")
    a(f"v_and_b32 v29, 3, v{LANE}")
    a(f"v_lshrrev_b32 v30, 1, v28")
    a(f"v_cmp_eq_u32 vcc, v29, v30")
    a(f"v_and_b32 v30, 1, v28")
    a(f"v_lshlrev_b32 v30, 4, v30")
    a(f"v_mov_b32 v31, 0x3f80")
    a(f"v_lshlrev_b32 v30, v30, v31")
    a(f"v_cndmask_b32 v30, 0, v30, vcc")
    a(f"v_cmp_gt_u32 vcc, 7, v28")
    a(f"v_lshlrev_b32 v29, 2, v{LANE}")
    a(f"v_add_u32 v29, {L_CNT}, v29")
    a(f"v_cndmask_b32 v30, 0, v30, vcc")
    a(f"v_min_u32 v31, 2, v{LANE}")
    a(f"v_lshlrev_b32 v31, 7, v31")
    a(f"v_lshl_add_u32 v31, v{LANE}, 10, v31")
    a(f"v_cmp_gt_u32 vcc, 16, v{LANE}")
    a(f"v_add_u32 v31, {L_LIST}, v31")
    a("s_nop 0")
    a(f"v_cndmask_b32 v31, 0, v31, vcc")
    a("s_mov_b64 exec, 0xffffffff")
    a(f"ds_write_b32 v29, v31")
    a(f"ds_write_b32 v29, v30 offset:{L_T-L_CNT}")
    a("s_mov_b64 exec, -1")
    a("K2_noinit:")
    a(f"s_waitcnt vmcnt({NP1})")
    a("s_setprio 3")
    stamp(a, cfg, 2)
    a(f"v_subrev_u32 v22, s{S_CLO}, v21")
    a(f"v_cmp_gt_u32 vcc, s{S_CN}, v22")
    a(f"v_lshrrev_b32 v{VREM}, 16, v20")
    a(f"v_and_b32 v20, 0xffff, v20")
    a(f"v_cndmask_b32 v{VREM}, 0, v{VREM}, vcc")
    a(f"v_subrev_u32 v{VREM}, s{S_SB}, v{VREM}")
    a(f"v_and_b32 v22, 1, v{TID}")
    a(f"s_lshr_b32 s{S_TMP}, s{S_SB}, 2")
    a(f"v_add3_u32 v20, v20, v22, s{S_TMP}")
    a(f"v_mul_u32_u24 v20, 20, v20")
    a(f"s_mov_b32 s{S_TMP}, {REC_STRIDE}")
    a(f"v_mad_u32_u24 v20, v21, s{S_TMP}, v20")
    a(f"v_cmp_lt_i32 s[{S_X}:{S_X+1}], 32, v{VREM}")
    a(f"v_lshlrev_b32 v22, 2, v22")
    a(f"v_sub_u32 v{VREM}, v{VREM}, v22")
    a(f"v_mov_b32 v23, {OOB}")
    a(f"s_mov_b32 s{S_TMP}, {WS_REC}")
    for k in range(4):
        a(f"v_cmp_lt_i32 vcc, {8*k}, v{VREM}")
        a("s_nop 1")
        a(f"v_cndmask_b32 v{24+k}, v23, v20, vcc")
        a(f"buffer_load_dwordx4 {vr(V_A+4*k,4)}, v{24+k}, s[{S_WS}:{S_WS+3}], s{S_TMP} offen offset:{40*k}")
        a(f"buffer_load_dword v{248+k}, v{24+k}, s[{S_WS}:{S_WS+3}], s{S_TMP} offen offset:{40*k+16}")
    a("s_setprio 0")
    a(f"s_mov_b32 s{S_TMP}, 100000")
    a(f"v_mul_u32_u24 v{VCB}, s{S_TMP}, v21")
    a(f"s_cmp_ge_u32 s{S_WAVE}, 2")
    a("s_cbranch_scc1 K2_nopd2")
    a(f"v_lshl_or_b32 v30, v31, 16, v30")
    a(f"v_mov_b32 v31, v32")
    a(f"v_lshl_add_u32 v29, v{TID}, 3, s{S_PD}")
    a(f"ds_write_b64 v29, v[30:31]")
    a("K2_nopd2:")
    for i in range(NP1, 18):
        pos_piece()
    a(f"s_cmp_ge_u32 s{S_WAVE}, 3")
    a("s_cbranch_scc1 K2_posdone")
    pos_piece()
    a("K2_posdone:")
    a(f"s_cmp_eq_u64 s[{S_X}:{S_X+1}], 0")
    a(f"s_cselect_b32 s{S_FLAG}, 0, 1")
    a(f"s_cmp_lg_u32 s{S_WAVE}, 3")
    a("s_cbranch_scc1 K2_now128")
    a(f"s_mov_b32 m0, {L_W128}")
    a(f"s_mov_b32 s{S_TMP2}, {128*128}")
    a("s_mov_b64 exec, 0xff")
    a(f"buffer_load_dwordx4 v{VL16}, s[{S_WE}:{S_WE+3}], s{S_TMP2} offen lds")
    a("s_mov_b64 exec, -1")
    a("K2_now128:")
    a("s_waitcnt vmcnt(0) lgkmcnt(0)")
    stamp(a, cfg, 3)
    a("s_barrier")
    stamp(a, cfg, 4)
    a(f"s_cmp_eq_u32 s{S_FLAG}, 0")
    a("s_cbranch_scc1 K2_noflag")
    a(f"v_mov_b32 v28, {L_FLAG}")
    a(f"v_mov_b32 v29, 1")
    a("ds_write_b32 v28, v29")
    a("K2_noflag:")
    late = []
    a(f"s_lshl_b32 s{S_X}, s{S_WAVE}, 11")
    a(f"s_add_u32 s{S_X}, s{S_X}, {WS_IMG + IMG_WH1*1024}")
    for i in range(2):
        a(f"buffer_load_dwordx4 {vr(V_WH[i],4)}, v{VL16}, s[{S_WS}:{S_WS+3}], s{S_X} offen offset:{1024*i}")
    a(f"v_mov_b32 v17, 4")
    a(f"s_mov_b32 s{S_TMP}, {L_CNT}")
    npf = cfg.get("pf", 0)

    def el_regs(e):
        return PRE0 + e, PRE1 + e, 232 + e, V_A + e, 248 + (e >> 2), 20 + 4 * (e & 7), V_TS + (e & 7)

    def el_issue(e):
        E0, E1, E2, RK, B, ps, sh = el_regs(e)
        pd = ps + 2
        a(f"v_bfe_u32 v{E1}, v{B}, {8*(e&3)}, 8")
        a(f"v_lshrrev_b32 v{E2}, 17, v{RK}")
        a(f"v_and_b32 v{E0}, 0x1ffff, v{RK}")
        a(f"v_cmp_lt_i32 vcc, {8*(e>>2) + (e&3)}, v{VREM}")
        a(f"v_and_b32 v{RK}, 15, v{E1}")
        a(f"v_mul_u32_u24 v{ps}, 6, v{E2}")
        a(f"v_lshl_add_u32 v{RK}, v{RK}, 2, s{S_TMP}")
        a(f"v_lshlrev_b32 v{sh}, 3, v{ps}")
        a(f"v_and_b32 v{ps}, -4, v{ps}")
        a(f"v_lshl_add_u32 v{pd}, v{E1}, 3, s{S_PD}")
        a(f"s_mov_b64 exec, vcc")
        a.dsop(f"ds_read2_b32 {vr(ps,2)}, v{ps} offset0:0 offset1:1", f"ps{e}")
        a.dsop(f"ds_read_b64 {vr(pd,2)}, v{pd}", f"pd{e}")
        a.dsop(f"ds_add_rtn_u32 v{RK}, v{RK}, v17", f"rk{e}")
        a("s_mov_b64 exec, -1")
        a(f"v_add_u32 v{E0}, v{E0}, v{VCB}")

    def el_post(e):
        E0, E1, E2, RK, B, ps, sh = el_regs(e)
        pd = ps + 2
        a(f"v_alignbit_b32 v{ps}, v{ps+1}, v{ps}, v{sh}")
        a(f"v_lshrrev_b32 v{ps+1}, v{sh}, v{ps+1}")
        a(f"v_lshlrev_b32 v{pd+1}, 16, v{pd+1}")
        a(f"v_lshlrev_b32 v{ps+1}, 16, v{ps+1}")
        a(f"v_and_b32 v{E1}, 0xffff0000, v{pd}")
        a(f"v_and_b32 v{sh}, 0xffff0000, v{ps}")
        a(f"v_lshlrev_b32 v{pd}, 16, v{pd}")
        a(f"v_lshlrev_b32 v{ps}, 16, v{ps}")
        a(f"v_sub_f32 v{pd+1}, v{pd+1}, v{ps+1}")
        a(f"v_sub_f32 v{E1}, v{E1}, v{sh}")
        a(f"v_sub_f32 v{pd}, v{pd}, v{ps}")
        a(f"v_cvt_pk_bf16_f32 v{E1}, v{E1}, v{pd+1}")
        a(f"v_cvt_pk_bf16_f32 v{pd}, 0, v{pd}")
        a(f"v_or_b32 v{E2}, v{E2}, v{pd}")
    a.ds = []
    for e in range(5):
        el_issue(e)
    for e in range(8):
        a.wait_ds(f"pd{e}")
        el_post(e)
        if e + 5 < 8:
            el_issue(e + 5)
    a(f"s_cmp_eq_u32 s{S_FIRST}, 0")
    a("s_cbranch_scc1 K2_nolate")
    a(f"v_and_b32 v20, 7, v{LANE}")
    a(f"v_bfe_u32 v21, v{LANE}, 3, 1")
    a(f"s_sub_u32 s{S_X}, s{S_WB}, s{S_WA}")
    a(f"s_add_u32 s{S_TMP2}, s{S_NB0}, s{S_WA}")
    a(f"v_lshl_add_u32 v20, v20, 4, s{S_TMP2}")
    a(f"v_mad_i32_i24 v20, v21, s{S_X}, v20")
    a(f"v_lshl_add_u32 v20, v20, 7, v{V_HF16}")
    a(f"s_mov_b32 exec_lo, 0xffff")
    a(f"s_mov_b32 exec_hi, 0xffff")
    for s in range(4):
        a(f"buffer_load_dwordx4 {vr(SAV0+4*s,4)}, v20, s[{S_H}:{S_H+3}], 0 offen offset:{32*s}")
    a("s_mov_b64 exec, -1")
    for o in range(18):
        if o % 4 == 0:
            a(f"s_mov_b32 s{S_X}, {WS_IMG + o*1024}")
        dst = ACC0 + 4 * o if o < 8 else V_W2 + 4 * (o - 8)
        a(f"buffer_load_dwordx4 {vr(dst,4)}, v{VL16}, s[{S_WS}:{S_WS+3}], s{S_X} offen offset:{(o&3)*1024}")
    if npf:
        a(f"s_lshr_b32 s{S_X}, s2, 3")
        a(f"s_mul_i32 s{S_X}, s{S_X}, {782*128}")
        a(f"v_mov_b32 v21, {OOB}")
        for i in range(2):
            a(f"v_add_u32 v20, {512*i}, v{TID}")
            a(f"v_cmp_gt_u32 vcc, {npf}, v20")
            a(f"v_lshlrev_b32 v20, 7, v20")
            a("s_nop 0")
            a(f"v_cndmask_b32 v20, v21, v20, vcc")
            a(f"buffer_load_dword v{SAV1+i}, v20, s[{S_H}:{S_H+3}], s{S_X} offen")
    a("K2_nolate:")
    for e in range(8, 16):
        a(f"v_cmp_lt_i32 vcc, {8*(e>>2) + (e&3)}, v{VREM}")
        a("s_nop 0")
        a("s_cmp_eq_u64 vcc, 0")
        a("s_cbranch_scc1 K2_g1skip")
        el_issue(e)
        a("s_waitcnt lgkmcnt(1)")
        el_post(e)
    a("K2_g1skip:")
    a("s_waitcnt lgkmcnt(0)")
    stamp(a, cfg, 5)
    a("s_barrier")
    a(f"v_and_b32 v28, 15, v{LANE}")
    a(f"v_lshl_add_u32 v29, v28, 2, s{S_TMP}")
    a(f"v_mov_b32 v31, {L_FLAG}")
    a("ds_read_b32 v30, v29")
    a("ds_read_b32 v31, v31")
    a(f"s_lshl_b32 s{S_TMP2}, s{S_WAVE}, 11")
    a(f"v_add_u32 v32, s{S_TMP2}, v{VL16}")
    a(f"v_add_u32 v33, {L_WH}, v32")
    a(f"v_add_u32 v32, {L_SB}, v32")
    for i in range(4):
        a(f"v_mov_b32 v{36+i}, 0")
    a(f"ds_write_b128 v32, v[36:39]")
    a(f"ds_write_b128 v32, v[36:39] offset:1024")
    a(f"v_min_u32 v34, 2, v28")
    a(f"v_lshlrev_b32 v34, 7, v34")
    a(f"v_lshl_add_u32 v34, v28, 10, v34")
    a(f"v_add_u32 v34, {L_LIST}, v34")
    a(f"v_cmp_gt_u32 vcc, 2, v28")
    a(f"v_mov_b32 v35, 1024")
    a(f"v_mov_b32 v29, 1152")
    a(f"v_cndmask_b32 v35, v35, v29, vcc")
    a("s_waitcnt lgkmcnt(2)")
    a(f"v_sub_u32 v30, v30, v34")
    a(f"v_readfirstlane_b32 s{S_FLAG}, v31")
    a(f"v_cmp_gt_u32 vcc, v30, v35")
    a(f"v_readlane_b32 s{S_X}, v30, s{S_WA}")
    a(f"v_readlane_b32 s{S_X+1}, v34, s{S_WA}")
    a(f"v_readlane_b32 s{S_Y}, v30, s{S_WB}")
    a(f"v_readlane_b32 s{S_BB}, v34, s{S_WB}")
    a(f"s_cmp_lg_u32 s{S_CN}, 256")
    a("s_cbranch_scc1 K2_fits")
    a(f"s_cmp_lg_u64 vcc, 0")
    a(f"s_cselect_b32 s{S_TMP}, 1, s{S_FLAG}")
    a(f"s_cmp_eq_u32 s{S_TMP}, 0")
    a("s_cbranch_scc1 K2_fits")
    a(f"s_mov_b32 s{S_CN}, 8")
    a("s_waitcnt vmcnt(0) lgkmcnt(0)")
    a("s_branch K2_batch")
    a("K2_fits:")
    for e in range(16):
        E0, E1, E2, RK, B, ps, sh = el_regs(e)
        a(f"v_cmp_lt_i32 vcc, {8*(e>>2) + (e&3)}, v{VREM}")
        a("s_nop 0")
        if e >= 8:
            a("s_cmp_eq_u64 vcc, 0")
            a("s_cbranch_scc1 K2_g1skip2")
        a(f"s_mov_b64 exec, vcc")
        a(f"ds_write_b32 v{RK}, v{E0}")
        a(f"ds_write_b32 v{RK}, v{E1} offset:{PL}")
        a(f"ds_write_b32 v{RK}, v{E2} offset:{2*PL}")
        a("s_mov_b64 exec, -1")
    a("K2_g1skip2:")
    a(f"s_add_u32 s{S_NA}, s{S_X}, 124")
    a(f"s_lshr_b32 s{S_NA}, s{S_NA}, 7")
    a(f"s_add_u32 s{S_NT}, s{S_Y}, 124")
    a(f"s_lshr_b32 s{S_NT}, s{S_NT}, 7")
    a(f"v_mov_b32 v28, s{S_X}")
    a(f"v_mov_b32 v29, s{S_Y}")
    a(f"v_cndmask_b32 v28, v28, v29, s[{S_HIM}:{S_HIM+1}]")
    a(f"v_mov_b32 v29, s{S_X+1}")
    a(f"v_mov_b32 v30, s{S_BB}")
    a(f"v_cndmask_b32 v29, v29, v30, s[{S_HIM}:{S_HIM+1}]")
    a(f"v_and_b32 v30, 31, v{LANE}")
    a(f"v_add_u32 v31, 124, v28")
    a(f"v_lshl_add_u32 v28, v30, 2, v28")
    a(f"v_and_b32 v31, 0xffffff80, v31")
    a(f"v_cmp_gt_u32 vcc, v31, v28")
    a(f"v_add_u32 v29, v29, v28")
    a(f"v_mov_b32 v30, {OOB | 28}")
    a(f"v_mov_b32 v31, 0xffff")
    a("s_mov_b64 exec, vcc")
    a("ds_write_b32 v29, v30")
    a(f"ds_write_b32 v29, v{V_ZERO} offset:{PL}")
    a(f"ds_write_b32 v29, v31 offset:{2*PL}")
    a("s_mov_b64 exec, -1")
    a(f"s_add_u32 s{S_NT}, s{S_NT}, s{S_NA}")
    nlate = 22 + (2 if npf else 0)
    a(f"s_cmp_eq_u32 s{S_FIRST}, 0")
    a("s_cbranch_scc0 K2_whf")
    a("s_waitcnt vmcnt(0)")
    a("K2_whf:")
    a(f"s_waitcnt vmcnt({nlate})")
    a(f"ds_write_b128 v33, {vr(V_WH[0],4)}")
    a(f"ds_write_b128 v33, {vr(V_WH[1],4)} offset:1024")
    a(f"s_cmp_eq_u32 s{S_NA}, 0")
    a(f"s_cselect_b32 s{S_X+1}, s{S_BB}, s{S_X+1}")
    a(f"s_add_u32 s{S_P2}, s{S_X+1}, 128")
    a(f"s_cmp_eq_u32 s{S_NA}, 1")
    a(f"s_cselect_b32 s{S_P2}, s{S_BB}, s{S_P2}")
    a(f"v_add_u32 v{V_PE[0]}, s{S_X+1}, v{V_LE}")
    a(f"v_add_u32 v{V_PE[1]}, s{S_P2}, v{V_LE}")
    a(f"v_add_u32 v{V_T}, s{S_X+1}, v{V_LG}")
    a(f"v_add_u32 v{V_T+1}, s{S_P2}, v{V_LG}")
    a("s_setprio 3")
    a("s_waitcnt lgkmcnt(0)")
    stamp(a, cfg, 6)
    a("s_barrier")
    stamp(a, cfg, 7)
    if cfg.get("stamps"):
        a(f"s_mov_b32 s101, s{S_NT}")
    if cfg.get("noh"):
        a(f"s_mov_b32 s{S_H+2}, 0")
    if cfg.get("noea"):
        a(f"s_mov_b32 s{S_EA+2}, 0")

    def h_addr(G):
        return [f"v_mad_u32_u16 v{G+q}, v{G+q}, s{S_C128}, v{V_CH1 if q & 1 else V_CH0}" for q in range(4)]

    def h_dma(G, p, q, soff):
        return [f"s_add_u32 m0, s{S_STG}, {p*4096+q*1024}", "s_nop 0",
                f"buffer_load_dwordx4 v{G+q}, s[{S_H}:{S_H+3}], {soff} offen lds"]
    a(f"ds_read_b32 v{V_J[0]}, v{V_PE[0]}")
    a(f"ds_read_b128 {vr(V_G4,4)}, v{V_T} offset:{2*PL}")
    a(f"ds_read_b128 {vr(V_XA,4)}, v{V_T+1} offset:{2*PL}")
    a(f"ds_read_b32 v{V_T+3}, v{V_PE[1]}")
    a(f"ds_read_b32 v{V_S[0]+1}, v{V_PE[0]} offset:{PL}")
    a(f"ds_read_b32 v{V_S[0]}, v{V_PE[0]} offset:{2*PL}")
    a(f"s_cmp_gt_u32 s{S_NT}, 0")
    a(f"s_cselect_b32 s{S_X}, 0, {OOB}")
    a(f"s_cmp_gt_u32 s{S_NT}, 1")
    a(f"s_cselect_b32 s{S_EOFF}, 0, {OOB}")
    a("s_waitcnt lgkmcnt(2)")
    for x in h_addr(V_G4) + h_addr(V_XA):
        a(x)
    a(f"v_and_or_b32 v{V_T+2}, v{V_J[0]}, s{S_M32}, v{V_HF16}")
    a(f"v_and_or_b32 v{V_T+3}, v{V_T+3}, s{S_M32}, v{V_HF16}")
    for q in range(4):
        for x in h_dma(V_G4, 0, q, f"s{S_X}"):
            a(x)
    a(f"buffer_load_dwordx4 {vr(V_EA[0],4)}, v{V_T+2}, s[{S_EA}:{S_EA+3}], s{S_X} offen {eaf}")
    for q in range(4):
        for x in h_dma(V_XA, 1, q, f"s{S_EOFF}"):
            a(x)
    a(f"buffer_load_dwordx4 {vr(V_EA[1],4)}, v{V_T+3}, s[{S_EA}:{S_EA+3}], s{S_EOFF} offen {eaf}")
    a(f"s_cmp_eq_u32 s{S_FIRST}, 0")
    a("s_cbranch_scc1 K2_notfirst2")
    a(f"s_mov_b32 s{S_FIRST}, 0")
    a(f"v_and_b32 v{V_T+2}, 31, v{LANE}")
    a(f"v_lshlrev_b32 v{V_T+2}, 1, v{V_T+2}")
    a(f"v_add_u32 v{V_T+2}, {L_W128}, v{V_T+2}")
    a(f"ds_read_u16_d16_hi v{V_T}, v{V_T+2}")
    a(f"ds_read_u16_d16_hi v{V_T+1}, v{V_T+2} offset:64")
    a(f"s_waitcnt vmcnt({10 + (2 if npf else 0)})")
    for s in range(4):
        mfma(a, PRE0, SAV0 + 4 * s, ACC0 + 8 * s, None if s == 0 else PRE0)
        mfma(a, PRE1, SAV0 + 4 * s, ACC0 + 8 * s + 4, None if s == 0 else PRE1)
    for i in range(48):
        a(f"v_mov_b32 v{ACC0+i}, 0")
    a("s_waitcnt lgkmcnt(0)")
    for nt in range(2):
        a(f"v_mul_f32 v{V_T+nt}, s{S_LOG}, v{V_T+nt}")
        a(f"v_cvt_pk_bf16_f32 v{V_T+2}, 0, v{V_T+nt}")
        a(f"v_sub_f32 v{V_T+nt}, v{V_T+nt}, v{V_T+2}")
        a(f"v_cvt_pk_bf16_f32 v{V_T+nt}, 0, v{V_T+nt}")
        a(f"v_cndmask_b32 v{V_T+nt}, v{V_T+2}, v{V_T+nt}, s[{S_HIM}:{S_HIM+1}]")
    for w in range(2):
        for nt in range(2):
            P = (PRE1 if nt else PRE0) + 4 * w
            XB = (V_XB2 if w else V_XB) + 4 * nt
            for k in range(4):
                a(f"v_mul_f32 v{P+k}, s{S_LOG}, v{P+k}")
            for k in range(2):
                a(f"v_cvt_pk_bf16_f32 v{XB+k}, v{P+2*k}, v{P+2*k+1}")
                a(f"v_lshlrev_b32 v{V_T+2}, 16, v{XB+k}")
                a(f"v_and_b32 v{V_T+3}, 0xffff0000, v{XB+k}")
                a(f"v_sub_f32 v{V_T+2}, v{P+2*k}, v{V_T+2}")
                a(f"v_sub_f32 v{V_T+3}, v{P+2*k+1}, v{V_T+3}")
                a(f"v_cvt_pk_bf16_f32 v{XB+2+k}, v{V_T+2}, v{V_T+3}")
            a("s_nop 1")
            a(f"v_permlane32_swap_b32 v{XB}, v{XB+2}")
            a(f"v_permlane32_swap_b32 v{XB+1}, v{XB+3}")
            a("s_nop 0")
            a(f"v_and_b32 v{XB+3}, 0xffff, v{XB+3}")
            a(f"v_or_b32 v{XB+3}, v{XB+3}, v{V_T+nt}")
    if npf:
        a("s_waitcnt vmcnt(10)")
    for i in range(16):
        a(f"v_mov_b32 v{SAV1+i}, 0")
    a("K2_notfirst2:")
    a(f"s_mov_b32 s{S_SWP}, 0")
    a(f"s_cmp_eq_u32 s{S_NT}, 0")
    a("s_cbranch_scc1 K2_tilesdone")
    for i in range(32):
        a(f"v_mov_b32 v{PRE0+i}, 0")
    for i in range(8):
        a(f"v_mov_b32 v{V_SO+i}, 0")
    a(f"s_mov_b32 s{S_I}, 0")

    def xa_ops(p):
        J, S = V_J[p], V_S[p]
        t = V_T
        o1 = [f"v_and_b32 v{J}, 31, v{J}",
              f"v_lshl_add_u32 v{t+3}, v{J}, 2, s{S_TB}",
              lambda: a.dsop(f"ds_read_b128 {vr(V_XA,4)}, v{t+3}", "xa"),
              f"v_and_b32 v{t}, 0xffff0000, v{S}",
              f"v_lshlrev_b32 v{t+1}, 16, v{S+1}",
              f"v_and_b32 v{t+2}, 0xffff0000, v{S+1}"]
        o2 = [f"v_or_b32 v{S}, 0x3f80, v{t}"] + [f"v_mul_f32 v{t+i}, v{t+i}, v{t+i}" for i in range(3)]
        o3 = [f"v_cvt_pk_bf16_f32 v{t+i}, 0, v{t+i}" for i in range(3)] + [f"v_lshl_add_u32 v{J}, v{J}, 1, v{V_SROW}"]
        o4 = [f"v_add_f32 v{t}, v{t}, v{t+1}", f"v_add_f32 v{t}, v{t}, v{t+2}", f"v_cvt_pk_bf16_f32 v{t}, 0, v{t}",
              lambda: a.wait_ds("xa"), f"v_or_b32 v{V_XA+3}, v{V_XA+3}, v{t}"]
        return o1, o2, o3, o4

    def a_reads(p):
        return [(lambda s=s: a.dsop(f"ds_read_b128 {vr(V_A+4*s,4)}, v{V_HA+s} offset:{4096*p}", f"a{s}")) for s in range(4)]
    a.ds = []
    a("s_waitcnt lgkmcnt(0)")
    for grp in xa_ops(0):
        for it in grp:
            it() if callable(it) else a(it)
    a("s_waitcnt vmcnt(5)")
    for it in a_reads(0):
        it()

    if cfg.get("late7"):
        stamp(a, cfg, 7)
    a("K2_tile:")
    for p in range(2):
        EA, J, S, PE = V_EA[p], V_J[p], V_S[p], V_PE[p]
        Jn, Sn, PEn = V_J[1 - p], V_S[1 - p], V_PE[1 - p]
        a.ds = ["a0", "a1", "a2", "a3"]
        a(f"s_cmp_lg_u32 s{S_I}, s{S_NA}")
        a(f"s_cbranch_scc1 K2_noxb{p}")
        for i in range(8):
            a(f"v_swap_b32 v{V_XB+i}, v{V_XB2+i}")
        a(f"K2_noxb{p}:")
        a(f"s_add_u32 s{S_P2}, s{S_P2}, 128")
        a(f"s_add_u32 s{S_TMP}, s{S_I}, 2")
        a(f"s_cmp_eq_u32 s{S_TMP}, s{S_NA}")
        a(f"s_cselect_b32 s{S_P2}, s{S_BB}, s{S_P2}")
        a(f"s_cmp_lt_u32 s{S_TMP}, s{S_NT}")
        a(f"s_cselect_b32 s{S_EOFF}, 0, {OOB}")
        sl = [[] for _ in range(8)]
        sl[0] = [f"v_add_u32 v{V_T+4}, s{S_P2}, v{V_LG}", f"v_add_u32 v{PE}, s{S_P2}, v{V_LE}",
                 lambda: a.dsop(f"ds_read_b128 {vr(V_G4,4)}, v{V_T+4} offset:{2*PL}", "g4"),
                 lambda: a.dsop(f"ds_read_b32 v{V_T+5}, v{PE}", "e2"),
                 mfs(ACC0, PRE0 + 8, V_SO + 4, ACC0)]
        sl[1] = [mfs(PRE0, V_XA, V_XB, None)]
        sl[2] = [lambda: a.dsop(f"ds_read_b32 v{Jn}, v{PEn}", "c0"),
                 lambda: a.dsop(f"ds_read_b32 v{Sn+1}, v{PEn} offset:{PL}", "c1"),
                 lambda: a.dsop(f"ds_read_b32 v{Sn}, v{PEn} offset:{2*PL}", "c2"),
                 mfs(PRE0, EA, V_W3, PRE0)]
        sl[3] = [lambda: a.wait_ds("e2")] + h_addr(V_G4) + [mfs(PRE0, V_A, V_W2, PRE0)]
        for q in range(3):
            sl[4 + q] = h_dma(V_G4, p, q, f"s{S_EOFF}") + [mfs(PRE0, V_A + 4 + 4 * q, V_W2 + 8 + 8 * q, PRE0)]
        sl[7] = h_dma(V_G4, p, 3, f"s{S_EOFF}") + [mfs(ACC1, PRE1, V_SO, ACC1)]
        phase(a, PRE1, sl, cfg)
        a(f"s_cmp_eq_u32 s{S_I}, s{S_NT}")
        a("s_cbranch_scc1 K2_drain")
        o1, o2, o3, o4 = xa_ops(1 - p)
        sl = [[] for _ in range(8)]
        sl[0] = [f"v_and_or_b32 v{V_T+5}, v{V_T+5}, s{S_M32}, v{V_HF16}", mfs(ACC1, PRE1 + 8, V_SO + 4, ACC1)]
        sl[1] = [mfs(PRE1, V_XA, V_XB + 4, None)]
        sl[2] = [f"s_mov_b64 exec, s[{S_LO32}:{S_LO32+1}]",
                 lambda: a.dsop(f"ds_write_b64 v{J}, {vr(S,2)}"),
                 "s_mov_b64 exec, -1",
                 lambda: a.dsop(f"ds_read_b64_tr_b16 {vr(V_SO,2)}, v{V_STR}", "s0"),
                 lambda: a.dsop(f"ds_read_b64_tr_b16 {vr(V_SO+2,2)}, v{V_STR} offset:512", "s1"),
                 lambda: a.dsop(f"ds_read_b64_tr_b16 {vr(V_SO+4,2)}, v{V_STR} offset:1024", "s2"),
                 lambda: a.dsop(f"ds_read_b64_tr_b16 {vr(V_SO+6,2)}, v{V_STR} offset:1536", "s3"),
                 f"s_mov_b64 exec, s[{S_LO32}:{S_LO32+1}]",
                 lambda: a.dsop(f"ds_write2_b32 v{J}, v{V_ZERO}, v{V_ZERO} offset0:0 offset1:1"),
                 "s_mov_b64 exec, -1",
                 lambda: a.wait_ds("c2")] + o1 + [mfs(PRE1, EA, V_W3 + 4, PRE1)]

        def swap_acc(p=p):
            a(f"s_cmp_lg_u32 s{S_I}, s{S_NA}")
            a(f"s_cbranch_scc1 K2_noacc{p}")
            for i in range(32):
                a(f"v_swap_b32 v{ACC0+i}, v{SAV0+i}")
            a(f"s_mov_b32 s{S_SWP}, 1")
            a(f"K2_noacc{p}:")
        sl[3] = [f"buffer_load_dwordx4 {vr(EA,4)}, v{V_T+5}, s[{S_EA}:{S_EA+3}], s{S_EOFF} offen {eaf}"] + o2 + \
                [mfs(PRE1, V_A, V_W2 + 4, PRE1)]
        sl[4] = o3 + [mfs(PRE1, V_A + 4, V_W2 + 12, PRE1)]
        sl[5] = [swap_acc] + o4 + [mfs(PRE1, V_A + 8, V_W2 + 20, PRE1)]
        sl[6] = [mfs(PRE1, V_A + 12, V_W2 + 28, PRE1)]

        def prio(p=p):
            if cfg.get("prio", 1):
                a(f"s_sub_u32 s{S_TMP}, s{S_NT}, s{S_I}")
                a(f"s_cmp_gt_u32 s{S_TMP}, {cfg.get('prioth', 3)}")
                a(f"s_cbranch_scc1 K2_pr{p}")
                a("s_setprio 2")
                a(f"s_cmp_gt_u32 s{S_TMP}, 1")
                a(f"s_cbranch_scc1 K2_pr{p}")
                a("s_setprio 1")
                a(f"s_cmp_gt_u32 s{S_TMP}, 0")
                a(f"s_cbranch_scc1 K2_pr{p}")
                a("s_setprio 0")
                a(f"K2_pr{p}:")
        sl[7] = [f"s_add_u32 s{S_I}, s{S_I}, 1", prio, "s_waitcnt vmcnt(5)"] + a_reads(1 - p) + [mfs(ACC0, PRE0, V_SO, ACC0)]
        phase(a, PRE0, sl, cfg)
        if p:
            a("s_branch K2_tile")
    a("K2_drain:")
    a("s_nop 0")
    mfma(a, ACC1, PRE1 + 8, V_SO + 4, ACC1)
    a(f"s_cmp_lg_u32 s{S_NA}, s{S_NT}")
    a("s_cbranch_scc1 K2_xbok")
    for i in range(8):
        a(f"v_swap_b32 v{V_XB+i}, v{V_XB2+i}")
    a("s_branch K2_tilesdone")
    a("K2_xbok:")
    for i in range(8):
        a(f"v_swap_b32 v{V_XB+i}, v{V_XB2+i}")
    a("s_nop 3")
    for i in range(32):
        a(f"v_swap_b32 v{ACC0+i}, v{SAV0+i}")
    a("K2_tilesdone:")
    a("s_waitcnt vmcnt(0) lgkmcnt(0)")
    a(f"s_cmp_eq_u32 s{S_CN}, 256")
    a("s_cbranch_scc1 K2_epi")
    a(f"s_add_u32 s{S_SB}, s{S_SB}, 32")
    a(f"s_cmp_lg_u32 s{S_FLAG}, 0")
    a("s_cbranch_scc1 K2_batch")
    a(f"s_mov_b32 s{S_SB}, 0")
    a(f"s_add_u32 s{S_CLO}, s{S_CLO}, 8")
    a(f"s_cmp_lt_u32 s{S_CLO}, 256")
    a("s_cbranch_scc1 K2_batch")

    a("K2_epi:")
    stamp(a, cfg, 8)
    if cfg.get("noh"):
        a(f"s_mov_b32 s{S_H+2}, {N*128}")
    LN = LANE
    a(f"s_sub_u32 s{S_X}, s{S_WB}, s{S_WA}")
    a(f"s_add_u32 s{S_TMP2}, s{S_NB0}, s{S_WA}")
    a(f"v_bfe_u32 v20, v{LN}, 2, 3")
    a(f"v_and_b32 v21, 1, v{LN}")
    a(f"v_lshl_add_u32 v20, v20, 4, s{S_TMP2}")
    a(f"v_mad_i32_i24 v20, v21, s{S_X}, v20")
    a(f"v_lshl_add_u32 v20, v20, 7, v{V_HF16}")
    for s in range(4):
        a(f"buffer_load_dwordx4 {vr(V_A+4*s,4)}, v20, s[{S_H}:{S_H+3}], 0 offen offset:{32*s}")
    a(f"v_and_b32 v22, 31, v{LN}")
    a(f"v_mov_b32 v23, {OOB}")
    AD, HD = 32, 80
    for w in range(2):
        a(f"v_add_u32 v{24+w}, s{S_WB if w else S_WA}, v{V_HF16}")
        a(f"v_add_u32 v26, s{S_NB0}, v{24+w}")
        a(f"v_lshlrev_b32 v26, 7, v26")
        a(f"v_lshl_add_u32 v26, v22, 1, v26")
        for q in range(4):
            a(f"v_add_u32 v27, {32*q}, v{24+w}")
            a(f"v_cmp_gt_u32 vcc, s{S_NN}, v27")
            a(f"v_add_u32 v27, {4096*q}, v26")
            a("s_nop 0")
            a(f"v_cndmask_b32 v{AD+4*w+q}, v23, v27, vcc")
            for nt in range(2):
                a(f"buffer_load_short_d16_hi v{HD+8*w+2*q+nt}, v{AD+4*w+q}, s[{S_H}:{S_H+3}], 0 offen offset:{64*nt}")
    a(f"v_and_b32 v26, 15, v{LN}")
    a(f"v_mul_u32_u24 v27, 86, v26")
    a(f"v_lshrrev_b32 v27, 8, v27")
    a(f"v_mul_u32_u24 v28, 3, v27")
    a(f"v_sub_u32 v28, v26, v28")
    a(f"v_bfe_u32 v29, v{LN}, 4, 1")
    a(f"v_mad_i32_i24 v29, v29, s{S_X}, v24")
    a(f"v_lshl_add_u32 v27, v27, 5, v29")
    a(f"v_cmp_gt_u32 vcc, s{S_NN}, v27")
    a(f"v_cmp_gt_u32 s[{S_Y}:{S_Y+1}], 12, v26")
    a(f"v_mad_u32_u24 v27, v27, 6, s{S_NB6}")
    a(f"v_lshl_add_u32 v27, v28, 1, v27")
    a(f"s_and_b64 vcc, vcc, s[{S_Y}:{S_Y+1}]")
    a(f"v_cndmask_b32 v30, v23, v27, vcc")
    a(f"buffer_load_short_d16_hi v31, v30, s[{S_POS}:{S_POS+3}], 0 offen")
    a(f"v_lshrrev_b32 v20, 1, v{V_HF16}")
    WX = 96
    for s in range(4):
        a(f"buffer_load_dwordx2 {vr(WX+4*s,2)}, v20, s[{S_WX}:{S_WX+3}], 0 offen offset:{32*s}")
        a(f"buffer_load_dwordx2 {vr(WX+4*s+2,2)}, v20, s[{S_WX}:{S_WX+3}], 0 offen offset:{32*s+16}")
    a(f"v_lshlrev_b32 v21, 4, v{LN}")
    a(f"v_add_u32 v21, {L_WH}, v21")
    BQ = [40, 44, 48, 68]
    a.ds = []
    seq = [(8 + 2 * s + nt, s, nt) for s in range(4) for nt in range(2)] + \
          [(2 * s + nt, 4 + s, nt) for s in range(4) for nt in range(2)]
    for i in range(3):
        a.dsop(f"ds_read_b128 {vr(BQ[i],4)}, v21 offset:{seq[i][0]*1024}", f"w{i}")
    a(f"s_mov_b32 s{S_TMP}, 0xbf317218")
    for k in range(64):
        a(f"v_mul_f32 v{ACC0+k}, s{S_TMP}, v{ACC0+k}")
    for AC in (ACC0, ACC1, SAV0, SAV1):
        for k in range(8):
            a(f"v_cvt_pk_bf16_f32 v{AC+k}, v{AC+2*k}, v{AC+2*k+1}")
    PA = [ACC0, ACC0 + 4, ACC1, ACC1 + 4]
    PB = [SAV0, SAV0 + 4, SAV1, SAV1 + 4]
    U3A, U3B = 112, 232
    a("s_waitcnt vmcnt(0)")
    for s in range(4):
        mfma(a, U3A, PA[s], WX + 4 * s, None if s == 0 else U3A)
        mfma(a, U3B, PB[s], WX + 4 * s, None if s == 0 else U3B)
    a("s_mov_b32 vcc_lo, 0xdddddddd")
    a("s_mov_b32 vcc_hi, 0xdddddddd")
    for s in range(4):
        for k in range(4):
            a(f"v_cndmask_b32_dpp v{PA[s]+k}, v{PB[s]+k}, v{PA[s]+k}, vcc quad_perm:[0,0,0,0] row_mask:0xf bank_mask:0xf")
    for i, (o, s, nt) in enumerate(seq):
        if i + 3 < len(seq):
            a.dsop(f"ds_read_b128 {vr(BQ[(i+3)&3],4)}, v21 offset:{seq[i+3][0]*1024}", f"w{i+3}")
        a.wait_ds(f"w{i}")
        U = PRE1 if nt else PRE0
        mfma(a, U, PA[s] if s < 4 else V_A + 4 * (s - 4), BQ[i & 3], None if i < 2 else U)
    a(f"v_mov_b32 v28, 0")
    for w in range(2):
        for i in range(12):
            a(f"s_mov_b32 s{S_Y}, {1 << (i + 16*w)}")
            a(f"s_mov_b32 s{S_Y+1}, {1 << (i + 16*w)}")
            a(f"v_cndmask_b32 v28, v28, v{(U3B if w else U3A) + 4*(i//3) + 1 + i % 3}, s[{S_Y}:{S_Y+1}]")
    a("v_add_f32 v28, v28, v31")
    a("v_cvt_pk_bf16_f32 v28, v28, v28")
    a(f"s_mov_b32 s{S_TMP}, {N*128}")
    a(f"buffer_store_short v28, v30, s[{S_OUT}:{S_OUT+3}], s{S_TMP} offen")
    for w in range(2):
        U = [(PRE1 if nt else PRE0) + 4 * q + w for q in range(4) for nt in range(2)]
        T = 40
        for i in range(8):
            a(f"v_mul_f32 v{T+i}, s{S_LOG}, v{U[i]}")
        for i in range(8):
            a(f"v_exp_f32 v{T+i}, v{T+i}")
        for i in range(8):
            a(f"v_add_f32 v{T+i}, 1.0, v{T+i}")
        for i in range(8):
            a(f"v_rcp_f32 v{T+i}, v{T+i}")
        for i in range(8):
            a(f"v_fma_f32 v{HD+8*w+i}, v{U[i]}, v{T+i}, v{HD+8*w+i}")
        for i in range(8):
            a(f"v_cvt_pk_bf16_f32 v{HD+8*w+i}, v{HD+8*w+i}, v{HD+8*w+i}")
        for i in range(8):
            a(f"buffer_store_short v{HD+8*w+i}, v{AD+4*w+(i>>1)}, s[{S_OUT}:{S_OUT+3}], 0 offen offset:{64*(i&1)}")
    if cfg.get("stamps"):
        a("s_waitcnt vmcnt(0)")
    stamp(a, cfg, 9)
    stamp(a, cfg, 10, True)
    stamp_out(a, cfg, S_WS, S_WAVE, 0x1000000)
    a("K2_end:")
    a("s_endpgm")
    return a.text(), desc("edge_kernel", 256, 102 if cfg.get("stamps") else 88)


HEADER = open(os.path.join(os.path.dirname(os.path.abspath(__file__)), "header.txt")).read()


CFG = {}


def build(cfg):
    CFG.update(cfg)
    c1, d1 = k1(cfg)
    c2, d2 = k2(cfg)
    out = HEADER
    out += f"; @launch kernel=sort_kernel grid=(256,1,1) block=(1024,1,1) lds={K1_LDS}\n"
    out += f"; @launch kernel=edge_kernel grid=(256,1,1) block=(512,1,1) lds={K2_LDS}\n"
    for i in range(cfg.get("empty", 0)):
        out += "; @launch kernel=nop_kernel grid=(256,1,1) block=(64,1,1) lds=0\n"
    out += '.amdgcn_target "amdgcn-amd-amdhsa--gfx950"\n.text\n'
    if cfg.get("empty", 0):
        out += ".globl nop_kernel\n.p2align 8\n.type nop_kernel,@function\nnop_kernel:\n    s_endpgm\n"
        d2 += desc("nop_kernel", 8, 8)
    out += ".globl sort_kernel\n.p2align 8\n.type sort_kernel,@function\n" + c1
    out += ".globl edge_kernel\n.p2align 8\n.type edge_kernel,@function\n" + c2
    out += '.section .rodata,"a"\n' + d1 + d2
    return out


if __name__ == "__main__":
    cfg = {}
    outp = "gather_scatter__cheap_equivariant_egnn__graph.s"
    for arg in sys.argv[1:]:
        if "=" in arg:
            k, v = arg.split("=", 1)
            cfg[k] = int(v) if v.lstrip("-").isdigit() else v
        else:
            outp = arg
    open(outp, "w").write(build(cfg))
    print("wrote", outp)
```

```python
import sys, os

N = 25000
E = 800000
NB = 98
CH = 3125
KN = "gather_scatter__cheap_equivariant_egnn__graph_kernel"
WS_EPOCH = 0
WS_TAB = 0x1000
WS_REC = 0x100000
REC_STRIDE = 19584
WS_SIZE = 268435456
OOB = 0x7FFFFFE0
SPIN_MAX = 400000

K1_STG, K1_CNT, K1_BASE = 0x0000, 0x5000, 0x5400
L_STG = 0x00000
L_W1 = 0x08000
L_LIST = 0x10000
PL = 16640
L_SB = 0x1C400
L_WH = 0x20400
L_W2 = 0x24C00
L_CNT = 0x27800
L_FLAG = 0x27840
L_T = 0x27880
L_PD = 0x27C00
LDS = 0x28000

S_H, S_POS, S_EA, S_WS, S_OUT, S_WE, S_WX, S_SRC, S_DST, S_WHD, S_DBG = range(16, 60, 4)
S_WAVE = 3
S_B, S_NB0, S_NN, S_CLO, S_CN, S_SB, S_NT, S_STG, S_TMP, S_TMP2 = range(60, 70)
S_C128, S_M32, S_TB, S_FLAG, S_EOFF, S_LOG, S_NB6, S_PD = range(70, 78)
S_WA, S_WB, S_NA, S_BB, S_I, S_P2 = range(78, 84)
S_N0, S_N1 = 84, 85
S_LEFT, S_SPIN = 86, 87
S_X, S_Y, S_HIM, S_LO32 = 4, 6, 8, 10

V_ZERO, V_CH0, V_CH1 = 0, 1, 2
V_HA = 3
V_SROW, V_STR, V_HF16, V_LG, V_LE, V_LANE, V_TID = 7, 8, 9, 10, 11, 12, 13
V_J = [14, 15]
V_S = [16, 18]
V_PE = [20, 21]
V_T = 22
V_G4 = 28
V_EA = [32, 36]
V_XA = 40
V_SO = 44
V_A = 52
V_TS = 68
V_TRN = 76
V_PF = 77
V_W2, V_W3, V_XB, V_XB2 = 80, 112, 120, 128
PRE0, PRE1 = 136, 152
ACC0, ACC1, SAV0, SAV1 = 168, 184, 200, 216


class Asm:
    def __init__(self):
        self.L = []
        self.ds = []

    def __call__(self, s):
        for line in s.split("\n"):
            line = line.strip()
            if line:
                self.L.append(line if line.endswith(":") else "    " + line)

    def emit(self, items):
        for it in items:
            it() if callable(it) else self(it)

    def dsop(self, s, tag=None):
        self(s)
        self.ds.append(tag)

    def wait_ds(self, *tags):
        idx = max(len(self.ds) - 1 - self.ds[::-1].index(t) for t in tags)
        n = len(self.ds) - 1 - idx
        assert n <= 15, n
        self(f"s_waitcnt lgkmcnt({n})")

    def srd(self, d, n):
        self(f"s_and_b32 s{d+1}, s{d+1}, 0xffff")
        self(f"s_mov_b32 s{d+2}, {n}")
        self(f"s_mov_b32 s{d+3}, 0x20000")

    def text(self):
        return "\n".join(self.L) + "\n"


def vr(a, n=1):
    return f"v{a}" if n == 1 else f"v[{a}:{a+n-1}]"


def sr(a, n=4):
    return f"s[{a}:{a+n-1}]"


def mfs(d, x, y, c):
    cs = "0" if c is None else vr(c, 16)
    return f"v_mfma_f32_32x32x16_bf16 {vr(d,16)}, {vr(x,4)}, {vr(y,4)}, {cs}"


def kernel(cfg):
    a = Asm()
    LANE, TID = V_LANE, V_TID
    eaf = cfg.get("ea_flag", "nt")
    npf = cfg.get("pf", 640)
    ST = cfg.get("st", "sc0 sc1")
    LD = cfg.get("ld", "sc1")

    def stamp(i, real=False):
        if cfg.get("stamps"):
            a("s_memrealtime s[88:89]" if real else "s_memtime s[88:89]")
            a("s_waitcnt lgkmcnt(0)")
            a(f"s_mov_b32 s{90+i}, s88")

    def mfma(d, x, y, c):
        a(mfs(d, x, y, c))

    def phase(x, slots):
        for g in range(4):
            y = x + 4 * g
            t = V_TS + 4 * (g & 1)
            a.emit(slots[2 * g])
            if not cfg.get("nosilu"):
                for i in range(4):
                    a(f"v_exp_f32 v{t+i}, v{y+i}")
                for i in (0, 2):
                    a(f"v_pk_add_f32 {vr(t+i,2)}, {vr(t+i,2)}, 1.0 op_sel_hi:[1,0]")
            a.emit(slots[2 * g + 1])
            if not cfg.get("nosilu"):
                for i in range(4):
                    a(f"v_rcp_f32 v{t+i}, v{t+i}")
                for i in (0, 2):
                    a(f"v_pk_mul_f32 {vr(t+i,2)}, {vr(y+i,2)}, {vr(t+i,2)}")
            d = x + 8 * (g >> 1) + 2 * (g & 1)
            a(f"v_cvt_pk_bf16_f32 v{d}, v{t}, v{t+1}")
            a(f"v_cvt_pk_bf16_f32 v{d+1}, v{t+2}, v{t+3}")

    a(f"{KN}:")
    a("s_cmp_ge_u32 s2, 256")
    a("s_cbranch_scc1 L_end")
    stamp(0, True)
    stamp(1)
    for srd, off in ((S_DST, 32), (S_SRC, 24), (S_WE, 40), (S_WS, 80), (S_POS, 8), (S_H, 0), (S_DBG, 72),
                     (S_EA, 16), (S_OUT, 64), (S_WX, 48), (S_WHD, 56)):
        a(f"s_load_dwordx2 {sr(srd,2)}, s[0:1], {off}")
    a("v_lshrrev_b32 v1, 6, v0")
    a(f"v_and_b32 v{LANE}, 63, v0")
    a(f"v_readfirstlane_b32 s{S_WAVE}, v1")
    a(f"v_mov_b32 v{TID}, v0")
    VL16, VT16 = 16, 17
    a(f"v_lshlrev_b32 v{VL16}, 4, v{LANE}")
    a(f"v_lshlrev_b32 v{VT16}, 4, v0")
    a(f"s_mul_i32 s{S_TMP}, s2, {CH*4}")
    a(f"s_add_u32 s{S_TMP2}, s{S_TMP}, 8192")
    a(f"s_and_b32 s{S_B}, s2, 7")
    a(f"s_lshl_b32 s{S_B}, s{S_B}, 5")
    a(f"s_lshr_b32 s{S_X}, s2, 3")
    a(f"s_add_u32 s{S_B}, s{S_B}, s{S_X}")
    a(f"s_mul_i32 s{S_NB0}, s{S_B}, {NB}")
    a(f"s_mul_i32 s{S_NB6}, s{S_NB0}, 6")
    a(f"v_cmp_gt_u32 vcc, 270, v0")
    a(f"v_mov_b32 v18, {OOB}")
    a(f"v_mov_b32 v{V_ZERO}, 0")
    a(f"v_cndmask_b32 v18, v18, v{VT16}, vcc")
    a("s_waitcnt lgkmcnt(0)")
    a.srd(S_DST, E * 4)
    a.srd(S_SRC, E * 4)
    a.srd(S_WS, WS_SIZE)
    a(f"s_xor_b32 s{S_SPIN}, s{S_WAVE}, 7")
    a(f"s_or_b32 s{S_SPIN}, s{S_SPIN}, s2")
    a(f"s_cmp_lg_u32 s{S_SPIN}, 0")
    a("s_cbranch_scc1 L_noepoch0")
    a(f"buffer_load_dwordx2 v[60:61], v{V_ZERO}, {sr(S_WS)}, 0 offen sc0 sc1" + (f" offset:{WS_EPOCH}" if WS_EPOCH else ""))
    a("L_noepoch0:")
    D, SR, BK, RKK = 20, 28, 36, 44
    a(f"buffer_load_dwordx4 {vr(D,4)}, v{VT16}, {sr(S_DST)}, s{S_TMP} offen nt")
    a(f"buffer_load_dwordx4 {vr(D+4,4)}, v18, {sr(S_DST)}, s{S_TMP2} offen nt")
    a(f"buffer_load_dwordx4 {vr(SR,4)}, v{VT16}, {sr(S_SRC)}, s{S_TMP} offen nt")
    a(f"buffer_load_dwordx4 {vr(SR+4,4)}, v18, {sr(S_SRC)}, s{S_TMP2} offen nt")
    a.srd(S_WE, 145 * 128)
    a.srd(S_POS, N * 6)
    a.srd(S_H, N * 128)
    a.srd(S_DBG, 256)
    a(f"s_lshl_b32 s{S_X}, s{S_WAVE}, 10")
    a(f"s_add_u32 m0, s{S_X}, {L_W2}")
    a(f"s_add_u32 s{S_X+1}, s{S_X}, 8192")
    a(f"buffer_load_dwordx4 v{VL16}, {sr(S_WE)}, s{S_X+1} offen lds")
    a(f"s_cmp_lt_u32 s{S_WAVE}, 3")
    a("s_cbranch_scc0 L_now2b")
    a(f"s_add_u32 m0, s{S_X}, {L_W2 + 8192}")
    a(f"s_add_u32 s{S_X+1}, s{S_X}, 16384")
    a(f"buffer_load_dwordx4 v{VL16}, {sr(S_WE)}, s{S_X+1} offen lds")
    a("s_branch L_w2b")
    a("L_now2b:")
    a(f"v_mov_b32 v52, {OOB}")
    a(f"buffer_load_dword v52, v52, {sr(S_WE)}, 0 offen")
    a("L_w2b:")
    a(f"v_mad_u32_u24 v53, v{TID}, 6, s{S_NB6}")
    a(f"v_mov_b32 v57, {OOB}")
    a(f"v_cmp_gt_u32 vcc, {NB}, v{TID}")
    a(f"s_lshr_b32 s{S_EOFF}, s2, 3")
    a(f"s_mul_i32 s{S_EOFF}, s{S_EOFF}, {782*128}")
    a(f"v_cndmask_b32 v53, v57, v53, vcc")
    for i in range(3):
        a(f"buffer_load_ushort v{54+i}, v53, {sr(S_POS)}, 0 offen offset:{2*i}")
    a(f"v_cmp_gt_u32 vcc, {npf}, v{TID}")
    a(f"v_lshlrev_b32 v58, 7, v{TID}")
    a("s_nop 0")
    a(f"v_cndmask_b32 v58, v57, v58, vcc")
    NY = 5
    a(f"s_cmp_lg_u32 s{S_SPIN}, 0")
    a("s_cbranch_scc1 L_noepoch")
    a("s_mov_b64 exec, 1")
    a(f"s_waitcnt vmcnt({4 + NY})")
    a("v_add_u32 v60, 1, v60")
    a("v_and_b32 v63, 0x3ff, v61")
    a("v_mov_b32 v62, v60")
    a("v_or_b32 v63, 0x80000000, v63")
    a(f"buffer_store_dwordx2 v[62:63], v{V_ZERO}, {sr(S_DBG)}, 0 offen sc0 sc1")
    a(f"buffer_store_dword v60, v{V_ZERO}, {sr(S_WS)}, 0 offen sc0 sc1" + (f" offset:{WS_EPOCH}" if WS_EPOCH else ""))
    a("s_mov_b64 exec, -1")
    a("L_noepoch:")
    a.srd(S_EA, E * 32)
    a.srd(S_OUT, N * 134)
    a.srd(S_WX, 128)
    a.srd(S_WHD, 128 * 128)
    a(f"s_sub_u32 s{S_NN}, {N}, s{S_NB0}")
    a(f"s_min_u32 s{S_NN}, s{S_NN}, {NB}")
    a(f"s_mov_b32 s{S_CLO}, 0")
    a(f"s_mov_b32 s{S_CN}, 256")
    a(f"s_mov_b32 s{S_SB}, 0")
    a(f"s_mov_b32 s{S_C128}, 128")
    a(f"s_mov_b32 s{S_M32}, 0xffffffe0")
    a(f"s_mov_b32 s{S_TB}, {L_T}")
    a(f"s_mov_b32 s{S_PD}, {L_PD}")
    a(f"s_mov_b32 s{S_LOG}, 0xbfb8aa3b")
    a(f"s_mov_b32 s{S_HIM}, 0")
    a(f"s_mov_b32 s{S_HIM+1}, -1")
    a(f"s_mov_b32 s{S_LO32}, -1")
    a(f"s_mov_b32 s{S_LO32+1}, 0")
    a(f"s_lshl_b32 s{S_STG}, s{S_WAVE}, 12")
    a(f"s_mov_b32 s{S_SPIN}, 0")

    def cursor_init(tag):
        a(f"s_cmp_lg_u32 s{S_WAVE}, 2")
        a(f"s_cbranch_scc1 L_noinit{tag}")
        a(f"v_lshrrev_b32 v60, 2, v{LANE}")
        a(f"v_and_b32 v61, 3, v{LANE}")
        a(f"v_lshrrev_b32 v62, 1, v60")
        a(f"v_cmp_eq_u32 vcc, v61, v62")
        a(f"v_and_b32 v62, 1, v60")
        a(f"v_lshlrev_b32 v62, 4, v62")
        a(f"v_mov_b32 v63, 0x3f80")
        a(f"v_lshlrev_b32 v62, v62, v63")
        a(f"v_cndmask_b32 v62, 0, v62, vcc")
        a(f"v_cmp_gt_u32 vcc, 7, v60")
        a(f"v_lshlrev_b32 v61, 2, v{LANE}")
        a(f"v_add_u32 v61, {L_CNT}, v61")
        a(f"v_cndmask_b32 v62, 0, v62, vcc")
        a(f"v_min_u32 v63, 2, v{LANE}")
        a(f"v_lshlrev_b32 v63, 7, v63")
        a(f"v_lshl_add_u32 v63, v{LANE}, 10, v63")
        a(f"v_cmp_gt_u32 vcc, 16, v{LANE}")
        a(f"v_add_u32 v63, {L_LIST}, v63")
        a("s_nop 0")
        a(f"v_cndmask_b32 v63, 0, v63, vcc")
        a("s_mov_b64 exec, 0xffffffff")
        a(f"ds_write_b32 v61, v63")
        a(f"ds_write_b32 v61, v62 offset:{L_T-L_CNT}")
        a("s_mov_b64 exec, -1")
        a(f"L_noinit{tag}:")
    cursor_init("0")
    a(f"s_cmp_lg_u32 s{S_WAVE}, 1")
    a("s_cbranch_scc1 L_nocnt")
    for i in range(4):
        a(f"v_mov_b32 v{60+i}, 0")
    a(f"ds_write_b128 v{VL16}, v[60:63] offset:{K1_CNT}")
    a("L_nocnt:")
    a("s_waitcnt lgkmcnt(0)")
    a("s_barrier")
    a(f"v_lshrrev_b32 v{V_HF16}, 5, v{LANE}")
    a(f"v_lshlrev_b32 v{V_HF16}, 4, v{V_HF16}")
    a(f"v_lshrrev_b32 v60, 4, v{LANE}")
    a(f"v_and_b32 v61, 7, v{LANE}")
    a(f"v_xor_b32 v60, v60, v61")
    a(f"v_lshlrev_b32 v{V_CH0}, 4, v60")
    a(f"v_xor_b32 v{V_CH1}, 64, v{V_CH0}")
    a(f"v_and_b32 v60, 31, v{LANE}")
    a(f"v_bfe_u32 v61, v60, 1, 3")
    a(f"v_lshlrev_b32 v61, 4, v61")
    a(f"v_xor_b32 v61, v61, v{V_HF16}")
    a(f"v_lshl_add_u32 v61, v60, 7, v61")
    a(f"v_add_u32 v{V_HA}, s{S_STG}, v61")
    for s in range(1, 4):
        a(f"v_xor_b32 v{V_HA+s}, {32*s}, v{V_HA}")
    a(f"s_lshl_b32 s{S_TMP}, s{S_WAVE}, 11")
    a(f"s_add_u32 s{S_TMP}, s{S_TMP}, {L_SB}")
    a(f"v_lshl_add_u32 v{V_SROW}, v60, 6, s{S_TMP}")
    a(f"v_bfe_u32 v61, v{LANE}, 4, 1")
    a(f"v_and_b32 v62, 3, v{LANE}")
    a(f"v_lshlrev_b32 v62, 3, v62")
    a(f"v_lshl_add_u32 v62, v61, 5, v62")
    a(f"v_bfe_u32 v61, v{LANE}, 2, 2")
    a(f"v_lshl_add_u32 v63, v61, 6, v62")
    a(f"v_lshl_add_u32 v63, v{V_HF16}, 4, v63")
    a(f"v_add_u32 v{V_STR}, s{S_TMP}, v63")
    a(f"v_lshl_add_u32 v63, v61, 7, v62")
    a(f"v_lshl_add_u32 v{V_TRN}, v{V_HF16}, 6, v63")
    a(f"v_lshrrev_b32 v{V_LG}, 3, v{LANE}")
    a(f"v_lshlrev_b32 v{V_LG}, 4, v{V_LG}")
    a(f"v_and_b32 v61, 7, v{LANE}")
    a(f"v_bfe_u32 v62, v{LANE}, 3, 2")
    a(f"v_lshl_add_u32 v61, v61, 2, v62")
    a(f"v_lshlrev_b32 v{V_LE}, 2, v61")
    for i in range(64):
        a(f"v_mov_b32 v{ACC0+i}, 0")
    a(f"v_mov_b32 v60, 270")
    a(f"v_cmp_gt_u32 {sr(S_X,2)}, v60, v{TID}")
    a(f"v_mov_b32 v60, 269")
    a(f"v_cmp_gt_u32 {sr(S_Y,2)}, v60, v{TID}")
    a(f"s_mov_b32 s{S_TMP}, 42800")
    a(f"s_mov_b32 s{S_TMP2}, {-NB}")
    a(f"v_mov_b32 v59, 1")
    a(f"v_lshlrev_b32 v60, 7, v{TID}")
    a(f"s_waitcnt vmcnt({NY + 2})")
    stamp(2)

    def k1_mask(e):
        if e == 4:
            a(f"s_mov_b64 exec, {sr(S_X,2)}")
        if e == 5:
            a(f"s_mov_b64 exec, {sr(S_Y,2)}")
    for e in range(8):
        a(f"v_mul_u32_u24 v{BK+e}, s{S_TMP}, v{D+e}")
        a(f"v_lshrrev_b32 v{BK+e}, 22, v{BK+e}")
        a(f"v_mad_i32_i24 v{D+e}, v{BK+e}, s{S_TMP2}, v{D+e}")
        a(f"v_lshlrev_b32 v{BK+e}, 2, v{BK+e}")
        k1_mask(e)
        a(f"ds_add_rtn_u32 v{RKK+e}, v{BK+e}, v59 offset:{K1_CNT}")
    a("s_mov_b64 exec, -1")
    a(f"s_waitcnt vmcnt({NY})")
    for e in range(8):
        a(f"v_lshl_or_b32 v{SR+e}, v{SR+e}, 17, v60")
        a(f"v_lshrrev_b32 v61, 2, v{D+e}")
        a(f"v_and_or_b32 v{SR+e}, v61, 28, v{SR+e}")
        if e < 7:
            a(f"v_add_u32 v60, {32 if e != 3 else 65536 - 96}, v60")
    pfw = cfg.get("pfw", 0)
    if pfw == 1:
        a(f"buffer_load_dword v{V_PF}, v58, {sr(S_H)}, s{S_EOFF} offen")
    a("s_waitcnt lgkmcnt(0)")
    a("s_barrier")
    C, G, BS = 232, 236, 240
    a(f"ds_read_b128 {vr(C,4)}, v{VL16} offset:{K1_CNT}")
    a(f"s_lshl_b32 s{S_TMP}, s{S_WAVE}, 10")
    a(f"s_add_u32 s{S_TMP}, s{S_TMP}, {L_W2}")
    a(f"v_add_u32 v61, s{S_TMP}, v{VL16}")
    a(f"s_waitcnt vmcnt({1 if pfw == 1 else 0})")
    a(f"ds_read_b128 v[64:67], v61")
    a(f"ds_read_b128 v[68:71], v61 offset:8192")
    a(f"v_lshl_or_b32 v54, v55, 16, v54")
    a(f"v_mov_b32 v55, v56")
    a(f"v_lshl_add_u32 v53, v{TID}, 3, s{S_PD}")
    a(f"s_cmp_ge_u32 s{S_WAVE}, 2")
    a("s_cbranch_scc1 L_nopd")
    a(f"ds_write_b64 v53, v[54:55]")
    a("L_nopd:")
    a("s_waitcnt lgkmcnt(0)")
    for k in range(4):
        a(f"v_add_u32 v{G+k}, 3, v{C+k}")
        a(f"v_lshrrev_b32 v{G+k}, 2, v{G+k}")
    a(f"v_add_u32 v{G+1}, v{G}, v{G+1}")
    a(f"v_add_u32 v{G+2}, v{G+1}, v{G+2}")
    a(f"v_add_u32 v{G+3}, v{G+2}, v{G+3}")
    a(f"v_mov_b32 v62, v{G+3}")

    def scale(r):
        return [f"v_lshlrev_b32 v63, 16, v{r}", f"v_and_b32 v{r}, 0xffff0000, v{r}",
                f"v_mul_f32 v63, s{S_LOG}, v63", f"v_mul_f32 v{r}, s{S_LOG}, v{r}",
                f"v_cvt_pk_bf16_f32 v{r}, v63, v{r}"]
    dpps = [f"row_shr:{sh} row_mask:0xf bank_mask:0xf bound_ctrl:0" for sh in (1, 2, 4, 8)] + \
           ["row_bcast:15 row_mask:0xa bank_mask:0xf", "row_bcast:31 row_mask:0xc bank_mask:0xf"]
    for i in range(4):
        a.emit(scale(64 + i))
        a(f"v_add_u32_dpp v62, v62, v62 {dpps[i]}")
    a(f"ds_write_b128 v61, v[64:67]")
    for i in (4, 5):
        a("s_nop 1")
        a(f"v_add_u32_dpp v62, v62, v62 {dpps[i]}")
    a(f"v_sub_u32 v{BS}, v62, v{G+3}")
    a(f"v_readlane_b32 s{S_LEFT}, v62, 63")
    a(f"v_add_u32 v{BS+1}, v{BS}, v{G}")
    a(f"v_add_u32 v{BS+2}, v{BS}, v{G+1}")
    a(f"v_add_u32 v{BS+3}, v{BS}, v{G+2}")
    a(f"ds_write_b128 v{VL16}, {vr(BS,4)} offset:{K1_BASE}")
    for e in range(8):
        a(f"ds_read_b32 v{BK+e}, v{BK+e} offset:{K1_BASE}")
    a(f"s_cmp_ge_u32 s{S_WAVE}, 3")
    a("s_cbranch_scc1 L_noscale2")
    for i in range(4):
        a.emit(scale(68 + i))
    a(f"s_cmp_eq_u32 s{S_WAVE}, 0")
    a(f"s_cselect_b32 exec_lo, 0xffffff00, -1")
    a(f"ds_write_b128 v61, v[68:71] offset:8192")
    a("s_mov_b64 exec, -1")
    a("L_noscale2:")
    a("s_waitcnt lgkmcnt(0)")
    for e in range(8):
        a(f"v_lshl_add_u32 v{RKK+e}, v{BK+e}, 2, v{RKK+e}")
        a(f"v_and_b32 v{BK+e}, -4, v{RKK+e}")
        a(f"v_lshl_add_u32 v61, v{RKK+e}, 2, v{BK+e}")
        a(f"v_lshl_add_u32 v62, v{BK+e}, 2, v{RKK+e}")
        k1_mask(e)
        a(f"ds_write_b32 v61, v{SR+e}" + (f" offset:{K1_STG}" if K1_STG else ""))
        a(f"ds_write_b8 v62, v{D+e} offset:{K1_STG+16}")
    a("s_mov_b64 exec, -1")
    a(f"buffer_load_dwordx2 v[56:57], v{V_ZERO}, {sr(S_DBG)}, 0 offen {LD}")
    a("s_waitcnt lgkmcnt(0)")
    a("s_barrier")
    for i in range(3):
        a(f"ds_read_b128 {vr(20+4*i,4)}, v{VT16} offset:{K1_STG + 8192*i}")
    a(f"s_mul_i32 s{S_TMP}, s{S_LEFT}, 20")
    a(f"s_mul_i32 s{S_TMP2}, s2, {REC_STRIDE}")
    a(f"s_add_u32 s{S_TMP2}, s{S_TMP2}, {WS_REC}")
    a(f"v_mov_b32 v35, {OOB}")
    for i in range(3):
        a(f"v_add_u32 v{32+i}, {8192*i}, v{VT16}")
        a(f"v_cmp_gt_u32 vcc, s{S_TMP}, v{32+i}")
        a(f"s_waitcnt lgkmcnt({2-i})")
        a("s_nop 0")
        a(f"v_cndmask_b32 v{32+i}, v35, v{32+i}, vcc")
        a(f"buffer_store_dwordx4 {vr(20+4*i,4)}, v{32+i}, {sr(S_WS)}, s{S_TMP2} offen {ST}")
    a("s_barrier")

    def pos_start():
        a(f"s_lshr_b32 s{S_TMP}, s2, 3")
        a(f"s_mul_i32 s{S_TMP}, s{S_TMP}, {cfg.get('rot', 4)}")
        a(f"s_add_u32 s{S_TMP}, s{S_TMP}, s{S_WAVE}")
        a(f"s_lshl_b32 s{S_EOFF}, s{S_TMP}, 10")
        a(f"s_sub_u32 s{S_EOFF}, s{S_EOFF}, 8192")

    def pos_piece():
        a(f"s_add_u32 s{S_EOFF}, s{S_EOFF}, 8192")
        a(f"s_sub_u32 s{S_TMP}, s{S_EOFF}, {147*1024}")
        a(f"s_cselect_b32 s{S_EOFF}, s{S_EOFF}, s{S_TMP}")
        a(f"s_mov_b32 m0, s{S_EOFF}")
        a("s_nop 0")
        a(f"buffer_load_dwordx4 v{VL16}, {sr(S_POS)}, s{S_EOFF} offen lds")
    NP1 = cfg.get("np1", 0)
    pos_start()
    for i in range(NP1):
        pos_piece()
    a(f"s_waitcnt vmcnt({NP1})")
    a("L_tagpoll:")
    a(f"v_readfirstlane_b32 s{S_N1}, v57")
    a(f"v_readfirstlane_b32 s{S_N0}, v56")
    a(f"s_cmp_lt_i32 s{S_N1}, 0")
    a("s_cbranch_scc1 L_tagok")
    a(f"s_add_u32 s{S_SPIN}, s{S_SPIN}, 1")
    a(f"s_cmp_gt_u32 s{S_SPIN}, {SPIN_MAX}")
    a("s_cbranch_scc1 L_end")
    a(f"buffer_load_dwordx2 v[56:57], v{V_ZERO}, {sr(S_DBG)}, 0 offen {LD}")
    a("s_waitcnt vmcnt(0)")
    a("s_branch L_tagpoll")
    a("L_tagok:")
    a(f"s_lshl_b32 s{S_N1}, s{S_N1}, 22")
    stamp(3)
    a("s_barrier")
    a(f"s_cmp_lg_u32 s{S_WAVE}, 0")
    a("s_cbranch_scc1 L_nopub")
    for k in range(4):
        a(f"v_lshl_or_b32 v{20+2*k}, v{C+k}, 10, v{BS+k}")
        a(f"v_or_b32 v{20+2*k}, s{S_N1}, v{20+2*k}")
        a(f"v_mov_b32 v{21+2*k}, s{S_N0}")
    a(f"s_lshl_b32 s{S_TMP}, s2, 11")
    a(f"s_add_u32 s{S_TMP}, s{S_TMP}, {WS_TAB}")
    a(f"v_lshlrev_b32 v28, 1, v{VL16}")
    a(f"buffer_store_dwordx4 v[20:23], v28, {sr(S_WS)}, s{S_TMP} offen {ST}")
    a(f"buffer_store_dwordx4 v[24:27], v28, {sr(S_WS)}, s{S_TMP} offen offset:16 {ST}")
    a("L_nopub:")
    if pfw == 2:
        a(f"s_lshr_b32 s{S_TMP}, s2, 3")
        a(f"s_mul_i32 s{S_TMP}, s{S_TMP}, {782*128}")
        a(f"buffer_load_dword v{V_PF}, v58, {sr(S_H)}, s{S_TMP} offen")
    a("s_branch L_batch0")

    a("L_batch:")
    a("s_barrier")
    cursor_init("1")
    a(f"v_lshlrev_b32 v{VL16}, 4, v{LANE}")
    pos_start()
    for i in range(NP1):
        pos_piece()
    a("s_waitcnt lgkmcnt(0)")
    a("s_barrier")
    a("L_batch0:")
    a(f"s_mov_b32 s{S_WA}, s{S_WAVE}")
    a(f"s_sub_u32 s{S_WB}, 15, s{S_WAVE}")
    a(f"v_add_u32 v20, {L_W2}, v{V_TRN}")
    for o in range(10):
        off = (o >> 1) * 2048 + (o & 1) * 64 + (128 if o >= 8 else 0)
        a(f"ds_read_b64_tr_b16 {vr(V_W2+4*o,2)}, v20 offset:{off}")
        a(f"ds_read_b64_tr_b16 {vr(V_W2+4*o+2,2)}, v20 offset:{off+512}")
    VREM, VCB, VFOUR = 14, 15, 17
    a(f"v_lshrrev_b32 v21, 1, v{TID}")
    a(f"v_lshlrev_b32 v22, 11, v21")
    a(f"s_lshl_b32 s{S_TMP2}, s{S_B}, 3")
    a(f"s_add_u32 s{S_TMP2}, s{S_TMP2}, {WS_TAB}")
    a(f"s_mov_b32 s{S_LEFT}, {18 - NP1}")
    a("L_poll:")
    a(f"buffer_load_dwordx2 v[24:25], v22, {sr(S_WS)}, s{S_TMP2} offen {LD}")
    a(f"s_cmp_lt_u32 s{S_LEFT}, 3")
    a("s_cbranch_scc1 L_pollonly")
    for i in range(3):
        pos_piece()
    a(f"s_sub_u32 s{S_LEFT}, s{S_LEFT}, 3")
    a("s_waitcnt vmcnt(3)")
    a("s_branch L_pollchk")
    a("L_pollonly:")
    a("s_waitcnt vmcnt(0)")
    a("L_pollchk:")
    a(f"v_and_b32 v23, 0xffc00000, v24")
    a(f"v_cmp_ne_u32 vcc, s{S_N0}, v25")
    a(f"v_cmp_ne_u32 {sr(S_X,2)}, s{S_N1}, v23")
    a(f"s_add_u32 s{S_SPIN}, s{S_SPIN}, 1")
    a(f"s_or_b64 vcc, vcc, {sr(S_X,2)}")
    a("s_cbranch_scc0 L_polled")
    a(f"s_cmp_gt_u32 s{S_SPIN}, {SPIN_MAX}")
    a("s_cbranch_scc0 L_poll")
    a("s_endpgm")
    a("L_polled:")
    stamp(4)
    a(f"v_subrev_u32 v22, s{S_CLO}, v21")
    a(f"v_cmp_gt_u32 vcc, s{S_CN}, v22")
    a(f"v_bfe_u32 v{VREM}, v24, 10, 12")
    a(f"v_and_b32 v20, 0x3ff, v24")
    a(f"v_cndmask_b32 v{VREM}, 0, v{VREM}, vcc")
    a(f"v_subrev_u32 v{VREM}, s{S_SB}, v{VREM}")
    a(f"v_and_b32 v22, 1, v{TID}")
    a(f"s_lshr_b32 s{S_TMP}, s{S_SB}, 2")
    a(f"v_add3_u32 v20, v20, v22, s{S_TMP}")
    a(f"v_mul_u32_u24 v20, 20, v20")
    a(f"s_mov_b32 s{S_TMP}, {REC_STRIDE}")
    a(f"v_mad_u32_u24 v20, v21, s{S_TMP}, v20")
    a(f"v_cmp_lt_i32 {sr(S_X,2)}, 32, v{VREM}")
    a(f"v_lshlrev_b32 v22, 2, v22")
    a(f"v_sub_u32 v{VREM}, v{VREM}, v22")
    a(f"v_mov_b32 v23, {OOB}")
    a(f"s_mov_b32 s{S_TMP}, {WS_REC}")
    for k in range(4):
        a(f"v_cmp_lt_i32 vcc, {8*k}, v{VREM}")
        a("s_nop 1")
        a(f"v_cndmask_b32 v{24+k}, v23, v20, vcc")
        a(f"buffer_load_dwordx4 {vr(V_A+4*k,4)}, v{24+k}, {sr(S_WS)}, s{S_TMP} offen offset:{40*k} {LD}")
        a(f"buffer_load_dword v{248+k}, v{24+k}, {sr(S_WS)}, s{S_TMP} offen offset:{40*k+16} {LD}")
    a(f"s_mov_b32 s{S_TMP}, 100000")
    a(f"v_mul_u32_u24 v{VCB}, s{S_TMP}, v21")
    a(f"v_mov_b32 v{VFOUR}, 4")
    a(f"s_cmp_eq_u64 {sr(S_X,2)}, 0")
    a("s_cbranch_scc1 L_noflag")
    a(f"v_mov_b32 v28, {L_FLAG}")
    a(f"ds_write_b32 v28, v{VFOUR}")
    a("L_noflag:")
    a(f"s_cmp_lt_u32 s{S_WAVE}, 3")
    a(f"s_addc_u32 s{S_LEFT}, s{S_LEFT}, 0")
    a(f"s_mov_b32 s{S_TMP2}, s{S_LEFT}")
    a("L_posrest:")
    a(f"s_cmp_eq_u32 s{S_LEFT}, 0")
    a("s_cbranch_scc1 L_posdone")
    pos_piece()
    a(f"s_sub_u32 s{S_LEFT}, s{S_LEFT}, 1")
    a("s_branch L_posrest")
    a("L_posdone:")
    a(f"s_cmp_ge_u32 s{S_TMP2}, 12")
    a("s_cbranch_scc1 L_rw12")
    a(f"s_cmp_ge_u32 s{S_TMP2}, 6")
    a("s_cbranch_scc1 L_rw6")
    a("s_waitcnt vmcnt(0)")
    a("L_rw6:")
    a("s_waitcnt vmcnt(6)")
    a("L_rw12:")
    a("s_waitcnt vmcnt(12)")
    a(f"s_mov_b32 s{S_TMP}, {L_CNT}")

    def el_regs(e):
        return PRE0 + e, PRE1 + e, 232 + e, V_A + e, 248 + (e >> 2), 20 + 4 * (e & 7), V_TS + (e & 7)

    def el_mask(e):
        return f"v_cmp_lt_i32 vcc, {8*(e>>2) + (e&3)}, v{VREM}"

    def el_decode(e):
        E0, E1, E2, RK, B, ps, sh = el_regs(e)
        a(f"v_bfe_u32 v{E1}, v{B}, {8*(e&3)}, 8")
        a(f"v_lshrrev_b32 v{E2}, 17, v{RK}")
        a(f"v_and_b32 v{E0}, 0x1ffff, v{RK}")
        a(el_mask(e))
        a(f"v_and_b32 v{RK}, 15, v{E1}")
        a(f"v_mul_u32_u24 v{ps}, 6, v{E2}")
        a(f"v_lshl_add_u32 v{RK}, v{RK}, 2, s{S_TMP}")
        a(f"s_mov_b64 exec, vcc")
        a.dsop(f"ds_add_rtn_u32 v{RK}, v{RK}, v{VFOUR}", f"rk{e}")
        a("s_mov_b64 exec, -1")
        a(f"v_lshlrev_b32 v{sh}, 3, v{ps}")
        a(f"v_and_b32 v{ps}, -4, v{ps}")
        a(f"v_lshl_add_u32 v{ps+2}, v{E1}, 3, s{S_PD}")
        a(f"v_add_u32 v{E0}, v{E0}, v{VCB}")

    def el_lookup(e, masked=True):
        E0, E1, E2, RK, B, ps, sh = el_regs(e)
        if masked:
            a(el_mask(e))
            a("s_nop 0")
            a(f"s_mov_b64 exec, vcc")
        a.dsop(f"ds_read2_b32 {vr(ps,2)}, v{ps} offset0:0 offset1:1", f"ps{e}")
        a.dsop(f"ds_read_b64 {vr(ps+2,2)}, v{ps+2}", f"pd{e}")
        if masked:
            a("s_mov_b64 exec, -1")

    def el_post(e):
        E0, E1, E2, RK, B, ps, sh = el_regs(e)
        pd = ps + 2
        a(f"v_alignbit_b32 v{ps}, v{ps+1}, v{ps}, v{sh}")
        a(f"v_lshrrev_b32 v{ps+1}, v{sh}, v{ps+1}")
        a(f"v_lshlrev_b32 v{pd+1}, 16, v{pd+1}")
        a(f"v_lshlrev_b32 v{ps+1}, 16, v{ps+1}")
        a(f"v_and_b32 v{E1}, 0xffff0000, v{pd}")
        a(f"v_and_b32 v{sh}, 0xffff0000, v{ps}")
        a(f"v_lshlrev_b32 v{pd}, 16, v{pd}")
        a(f"v_lshlrev_b32 v{ps}, 16, v{ps}")
        a(f"v_sub_f32 v{pd+1}, v{pd+1}, v{ps+1}")
        a(f"v_sub_f32 v{E1}, v{E1}, v{sh}")
        a(f"v_sub_f32 v{pd}, v{pd}, v{ps}")
        a(f"v_cvt_pk_bf16_f32 v{E1}, v{E1}, v{pd+1}")
        a(f"v_cvt_pk_bf16_f32 v{pd}, 0, v{pd}")
        a(f"v_or_b32 v{E2}, v{E2}, v{pd}")
    a.ds = []
    for e in range(8):
        el_decode(e)
    a("s_waitcnt vmcnt(0)")
    a("s_barrier")
    stamp(5)
    a.ds = []
    for e in range(7):
        el_lookup(e, e >= 4)
    pf0 = cfg.get("pf0", 384)
    a(f"s_lshr_b32 s{S_EOFF}, s2, 3")
    a(f"s_mul_i32 s{S_EOFF}, s{S_EOFF}, {782*128}")
    a(f"v_mov_b32 v79, {OOB}")
    for i in range(2):
        a(f"v_lshl_add_u32 v{18+i}, v{LANE}, 3, s{S_WAVE}")
        a(f"v_cmp_gt_u32 vcc, {pf0 if i == 0 else max(npf - pf0, 0)}, v{18+i}")
        a(f"v_add_u32 v{18+i}, {pf0 * i}, v{18+i}")
        a(f"v_lshlrev_b32 v{18+i}, 7, v{18+i}")
        a(f"v_cndmask_b32 v{18+i}, v79, v{18+i}, vcc")

    def pf_point(i, k):
        if npf:
            a(f"s_cmp_lg_u32 s{S_WAVE}, {k}")
            a(f"s_cbranch_scc1 L_pf{i}_{k}")
            a(f"buffer_load_dword v{V_PF+i}, v{18+i}, {sr(S_H)}, s{S_EOFF} offen")
            a(f"L_pf{i}_{k}:")
    for e in range(8):
        a.wait_ds(f"pd{e}")
        el_post(e)
        if e == 0:
            el_lookup(7)
        pf_point(0, e)
    for e in range(8, 16):
        a(el_mask(e))
        a("s_nop 0")
        a("s_cmp_eq_u64 vcc, 0")
        a("s_cbranch_scc1 L_g1skip")
        el_decode(e)
        el_lookup(e)
        a("s_waitcnt lgkmcnt(0)")
        el_post(e)
    a("L_g1skip:")
    a("s_waitcnt lgkmcnt(0)")
    a("s_barrier")
    a(f"v_and_b32 v28, 15, v{LANE}")
    a(f"v_lshl_add_u32 v29, v28, 2, s{S_TMP}")
    a(f"v_mov_b32 v31, {L_FLAG}")
    a("ds_read_b32 v30, v29")
    a("ds_read_b32 v31, v31")
    a(f"s_lshl_b32 s{S_X}, s{S_WAVE}, 10")
    a(f"s_add_u32 m0, s{S_X}, {L_W1}")
    a(f"s_add_u32 s{S_X+1}, s{S_X}, 8192")
    a(f"buffer_load_dwordx4 v{VL16}, {sr(S_WE)}, s{S_X} offen lds")
    a(f"s_add_u32 m0, s{S_X}, {L_WH}")
    a(f"s_lshl_b32 s{S_TMP2}, s{S_WAVE}, 11")
    a(f"buffer_load_dwordx4 v{VL16}, {sr(S_WHD)}, s{S_X} offen lds")
    a(f"s_add_u32 m0, s{S_X}, {L_WH + 8192}")
    a(f"v_add_u32 v32, s{S_TMP2}, v{VL16}")
    a(f"buffer_load_dwordx4 v{VL16}, {sr(S_WHD)}, s{S_X+1} offen lds")
    a(f"v_add_u32 v32, {L_SB}, v32")
    for i in range(4):
        a(f"v_mov_b32 v{36+i}, 0")
    a(f"ds_write_b128 v32, v[36:39]")
    a(f"ds_write_b128 v32, v[36:39] offset:1024")
    a(f"v_min_u32 v34, 2, v28")
    a(f"v_lshlrev_b32 v34, 7, v34")
    a(f"v_lshl_add_u32 v34, v28, 10, v34")
    a(f"v_add_u32 v34, {L_LIST}, v34")
    a(f"v_cmp_gt_u32 vcc, 2, v28")
    a(f"v_mov_b32 v35, 1024")
    a(f"v_mov_b32 v29, 1152")
    a(f"v_cndmask_b32 v35, v35, v29, vcc")
    a("s_waitcnt lgkmcnt(2)")
    a(f"v_sub_u32 v30, v30, v34")
    a(f"v_readfirstlane_b32 s{S_FLAG}, v31")
    a(f"v_cmp_gt_u32 vcc, v30, v35")
    a(f"s_cmp_lg_u32 s{S_CN}, 256")
    a("s_cbranch_scc1 L_fits")
    a(f"s_cmp_lg_u64 vcc, 0")
    a(f"s_cselect_b32 s{S_TMP}, 1, s{S_FLAG}")
    a(f"s_cmp_eq_u32 s{S_TMP}, 0")
    a("s_cbranch_scc1 L_fits")
    a(f"s_mov_b32 s{S_CN}, 8")
    a("s_waitcnt vmcnt(0) lgkmcnt(0)")
    a("s_branch L_batch")
    a("L_fits:")

    def list_write(e):
        E0, E1, E2, RK, B, ps, sh = el_regs(e)
        a(el_mask(e))
        a("s_nop 0")
        if e >= 8:
            a("s_cmp_eq_u64 vcc, 0")
            a("s_cbranch_scc1 L_g1skip2")
        a(f"s_mov_b64 exec, vcc")
        a(f"ds_write_b32 v{RK}, v{E0}")
        a(f"ds_write_b32 v{RK}, v{E1} offset:{PL}")
        a(f"ds_write_b32 v{RK}, v{E2} offset:{2*PL}")
        a("s_mov_b64 exec, -1")
        if 2 <= e < 8:
            pf_point(1, e)
        if e == 2:
            pf_point(1, 0)
        if e == 3:
            pf_point(1, 1)
    list_write(0)
    list_write(1)
    if cfg.get("bal", 1):
        a(f"s_cmp_lg_u32 s{S_CN}, 256")
        a("s_cbranch_scc1 L_nobal")
        a(f"v_lshl_add_u32 v29, v30, 4, v28")
        a(f"v_mov_b32 v31, 0")
        a("s_nop 0")
        for k in range(1, 16):
            a(f"v_sub_co_u32_dpp v33, vcc, v29, v29 row_ror:{k} row_mask:0xf bank_mask:0xf")
            a("s_nop 1")
            a(f"v_addc_co_u32 v31, vcc, 0, v31, vcc")
        a(f"s_sub_u32 s{S_TMP}, 11, s{S_WAVE}")
        a(f"s_cmp_lt_u32 s{S_WAVE}, 4")
        a(f"s_cselect_b32 s{S_TMP}, s{S_WAVE}, s{S_TMP}")
        a(f"s_sub_u32 s{S_TMP2}, 15, s{S_TMP}")
        a(f"v_cmp_eq_u32 vcc, s{S_TMP}, v31")
        a(f"v_cmp_eq_u32 {sr(S_X,2)}, s{S_TMP2}, v31")
        a("s_nop 0")
        a(f"s_ff1_i32_b32 s{S_WA}, vcc_lo")
        a(f"s_ff1_i32_b32 s{S_WB}, s{S_X}")
        a("L_nobal:")
    a(f"v_and_b32 v20, 7, v{LANE}")
    a(f"v_bfe_u32 v21, v{LANE}, 3, 1")
    a(f"s_sub_u32 s{S_X}, s{S_WB}, s{S_WA}")
    a(f"s_add_u32 s{S_TMP2}, s{S_NB0}, s{S_WA}")
    a(f"v_lshl_add_u32 v20, v20, 4, s{S_TMP2}")
    a(f"v_mad_i32_i24 v20, v21, s{S_X}, v20")
    a(f"v_lshl_add_u32 v20, v20, 7, v{V_HF16}")
    a(f"s_mov_b32 exec_lo, 0xffff")
    a(f"s_mov_b32 exec_hi, 0xffff")
    for s in range(4):
        a(f"buffer_load_dwordx4 {vr(V_XB+4*s,4)}, v20, {sr(S_H)}, 0 offen offset:{32*s}")
    a("s_mov_b64 exec, -1")
    a(f"v_readlane_b32 s{S_X}, v30, s{S_WA}")
    a(f"v_readlane_b32 s{S_X+1}, v34, s{S_WA}")
    a(f"v_readlane_b32 s{S_Y}, v30, s{S_WB}")
    a(f"v_readlane_b32 s{S_BB}, v34, s{S_WB}")
    for e in range(2, 16):
        list_write(e)
    a("L_g1skip2:")
    a(f"s_add_u32 s{S_NA}, s{S_X}, 124")
    a(f"s_lshr_b32 s{S_NA}, s{S_NA}, 7")
    a(f"s_add_u32 s{S_NT}, s{S_Y}, 124")
    a(f"s_lshr_b32 s{S_NT}, s{S_NT}, 7")
    a(f"v_mov_b32 v28, s{S_X}")
    a(f"v_mov_b32 v29, s{S_Y}")
    a(f"v_cndmask_b32 v28, v28, v29, {sr(S_HIM,2)}")
    a(f"v_mov_b32 v29, s{S_X+1}")
    a(f"v_mov_b32 v30, s{S_BB}")
    a(f"v_cndmask_b32 v29, v29, v30, {sr(S_HIM,2)}")
    a(f"v_and_b32 v30, 31, v{LANE}")
    a(f"v_add_u32 v31, 124, v28")
    a(f"v_lshl_add_u32 v28, v30, 2, v28")
    a(f"v_and_b32 v31, 0xffffff80, v31")
    a(f"v_cmp_gt_u32 vcc, v31, v28")
    a(f"v_add_u32 v29, v29, v28")
    a(f"v_mov_b32 v30, {OOB | 28}")
    a(f"v_mov_b32 v31, 0xffff")
    a("s_mov_b64 exec, vcc")
    a("ds_write_b32 v29, v30")
    a(f"ds_write_b32 v29, v{V_ZERO} offset:{PL}")
    a(f"ds_write_b32 v29, v31 offset:{2*PL}")
    a("s_mov_b64 exec, -1")
    a(f"s_add_u32 s{S_NT}, s{S_NT}, s{S_NA}")
    a(f"s_cmp_eq_u32 s{S_NA}, 0")
    a(f"s_cselect_b32 s{S_X+1}, s{S_BB}, s{S_X+1}")
    a(f"s_add_u32 s{S_P2}, s{S_X+1}, 128")
    a(f"s_cmp_eq_u32 s{S_NA}, 1")
    a(f"s_cselect_b32 s{S_P2}, s{S_BB}, s{S_P2}")
    a(f"v_add_u32 v{V_PE[0]}, s{S_X+1}, v{V_LE}")
    a(f"v_add_u32 v{V_PE[1]}, s{S_P2}, v{V_LE}")
    a(f"v_add_u32 v{V_T}, s{S_X+1}, v{V_LG}")
    a(f"v_add_u32 v{V_T+1}, s{S_P2}, v{V_LG}")
    a("s_setprio 3")
    a(f"s_waitcnt vmcnt({5 if npf else 4}) lgkmcnt(0)")
    stamp(6)
    a("s_barrier")
    if not cfg.get("late7"):
        stamp(7)
    if cfg.get("stamps"):
        a(f"s_mov_b32 s101, s{S_NT}")
    if cfg.get("noh"):
        a(f"s_mov_b32 s{S_H+2}, 0")
    if cfg.get("noea"):
        a(f"s_mov_b32 s{S_EA+2}, 0")

    def h_addr(G):
        return [f"v_mad_u32_u16 v{G+q}, v{G+q}, s{S_C128}, v{V_CH1 if q & 1 else V_CH0}" for q in range(4)]

    def h_dma(G, p, q, soff, mid="s_nop 0"):
        return [f"s_add_u32 m0, s{S_STG}, {p*32768+q*1024}", mid,
                f"buffer_load_dwordx4 v{G+q}, {sr(S_H)}, {soff} offen lds"]
    W1R = [232 + 4 * o for o in range(6)] + [V_TS, V_TS + 4]
    a.ds = []
    a.dsop(f"ds_read_b32 v{V_J[0]}, v{V_PE[0]}", "j0")
    a.dsop(f"ds_read_b128 {vr(V_G4,4)}, v{V_T} offset:{2*PL}", "g0")
    a.dsop(f"ds_read_b128 {vr(V_SO,4)}, v{V_T+1} offset:{2*PL}", "g1")
    a.dsop(f"ds_read_b32 v{V_T+5}, v{V_PE[1]}", "j1")
    a.dsop(f"ds_read_b32 v{V_S[0]+1}, v{V_PE[0]} offset:{PL}")
    a.dsop(f"ds_read_b32 v{V_S[0]}, v{V_PE[0]} offset:{2*PL}")
    a(f"s_cmp_gt_u32 s{S_NT}, 0")
    a(f"s_cselect_b32 s{S_X}, 0, {OOB}")
    a(f"s_cmp_gt_u32 s{S_NT}, 1")
    a(f"s_cselect_b32 s{S_EOFF}, 0, {OOB}")
    a.wait_ds("g0")
    for o in range(8):
        off = L_W1 + (o >> 1) * 2048 + (o & 1) * 64
        a(f"ds_read_b64_tr_b16 {vr(W1R[o],2)}, v{V_TRN} offset:{off}")
        a(f"ds_read_b64_tr_b16 {vr(W1R[o]+2,2)}, v{V_TRN} offset:{off+512}")
    a.emit(h_addr(V_G4))
    a(f"v_and_or_b32 v{V_T+2}, v{V_J[0]}, s{S_M32}, v{V_HF16}")
    for q in range(4):
        a.emit(h_dma(V_G4, 0, q, f"s{S_X}"))
    a(f"buffer_load_dwordx4 {vr(V_EA[0],4)}, v{V_T+2}, {sr(S_EA)}, s{S_X} offen {eaf}")
    a(f"v_and_b32 v{V_T+2}, 31, v{LANE}")
    a(f"v_lshlrev_b32 v{V_T+2}, 1, v{V_T+2}")
    a(f"v_add_u32 v{V_T+2}, {L_W2 + 8192}, v{V_T+2}")
    a(f"ds_read_u16_d16_hi v{V_T}, v{V_T+2}")
    a(f"ds_read_u16_d16_hi v{V_T+1}, v{V_T+2} offset:64")
    a("s_waitcnt lgkmcnt(0)")
    a("s_barrier")
    a.emit(h_addr(V_SO))
    a(f"v_and_or_b32 v{V_T+5}, v{V_T+5}, s{S_M32}, v{V_HF16}")
    for q in range(4):
        a.emit(h_dma(V_SO, 1, q, f"s{S_EOFF}"))
    a(f"buffer_load_dwordx4 {vr(V_EA[1],4)}, v{V_T+5}, {sr(S_EA)}, s{S_EOFF} offen {eaf}")
    a(f"s_waitcnt vmcnt({11 if npf else 10})")
    for s in range(4):
        mfma(PRE0, V_XB + 4 * s, W1R[2 * s], None if s == 0 else PRE0)
        mfma(PRE1, V_XB + 4 * s, W1R[2 * s + 1], None if s == 0 else PRE1)
    for nt in range(2):
        a(f"v_mul_f32 v{V_T+nt}, s{S_LOG}, v{V_T+nt}")
        a(f"v_cvt_pk_bf16_f32 v{V_T+2}, 0, v{V_T+nt}")
        a(f"v_sub_f32 v{V_T+nt}, v{V_T+nt}, v{V_T+2}")
        a(f"v_cvt_pk_bf16_f32 v{V_T+nt}, 0, v{V_T+nt}")
        a(f"v_cndmask_b32 v{V_T+nt}, v{V_T+2}, v{V_T+nt}, {sr(S_HIM,2)}")
    a("s_nop 1")
    for w in range(2):
        for nt in range(2):
            P = (PRE1 if nt else PRE0) + 4 * w
            XB = (V_XB2 if w else V_XB) + 4 * nt
            for k in range(4):
                a(f"v_mul_f32 v{P+k}, s{S_LOG}, v{P+k}")
            for k in range(2):
                a(f"v_cvt_pk_bf16_f32 v{XB+k}, v{P+2*k}, v{P+2*k+1}")
                a(f"v_lshlrev_b32 v{V_T+2}, 16, v{XB+k}")
                a(f"v_and_b32 v{V_T+3}, 0xffff0000, v{XB+k}")
                a(f"v_sub_f32 v{V_T+2}, v{P+2*k}, v{V_T+2}")
                a(f"v_sub_f32 v{V_T+3}, v{P+2*k+1}, v{V_T+3}")
                a(f"v_cvt_pk_bf16_f32 v{XB+2+k}, v{V_T+2}, v{V_T+3}")
            a("s_nop 1")
            a(f"v_permlane32_swap_b32 v{XB}, v{XB+2}")
            a(f"v_permlane32_swap_b32 v{XB+1}, v{XB+3}")
            a("s_nop 0")
            a(f"v_and_b32 v{XB+3}, 0xffff, v{XB+3}")
            a(f"v_or_b32 v{XB+3}, v{XB+3}, v{V_T+nt}")
    a(f"s_mov_b32 s{S_I}, 0")
    a(f"s_cmp_eq_u32 s{S_NT}, 0")
    a("s_cbranch_scc1 L_tail")
    for i in range(4):
        a(f"v_mov_b32 v{PRE1+8+i}, 0")
        a(f"v_mov_b32 v{V_SO+4+i}, 0")

    def xa_ops(p):
        J, S = V_J[p], V_S[p]
        t = V_T
        o1 = [f"v_and_b32 v{J}, 31, v{J}",
              f"v_lshl_add_u32 v{t+3}, v{J}, 2, s{S_TB}",
              lambda: a.dsop(f"ds_read_b128 {vr(V_XA,4)}, v{t+3}", "xa"),
              f"v_and_b32 v{t}, 0xffff0000, v{S}",
              f"v_lshlrev_b32 v{t+1}, 16, v{S+1}",
              f"v_and_b32 v{t+2}, 0xffff0000, v{S+1}"]
        o2 = [f"v_or_b32 v{S}, 0x3f80, v{t}"] + [f"v_mul_f32 v{t+i}, v{t+i}, v{t+i}" for i in range(3)]
        o3 = [f"v_cvt_pk_bf16_f32 v{t+i}, 0, v{t+i}" for i in range(3)] + [f"v_lshl_add_u32 v{J}, v{J}, 1, v{V_SROW}"]
        o4 = [f"v_add_f32 v{t}, v{t}, v{t+1}", f"v_add_f32 v{t}, v{t}, v{t+2}", f"v_cvt_pk_bf16_f32 v{t}, 0, v{t}",
              lambda: a.wait_ds("xa"), f"v_or_b32 v{V_XA+3}, v{V_XA+3}, v{t}"]
        return o1, o2, o3, o4

    def a_reads(p):
        return [(lambda s=s: a.dsop(f"ds_read_b128 {vr(V_A+4*s,4)}, v{V_HA+s} offset:{32768*p}", f"a{s}")) for s in range(4)]
    a.ds = []
    for grp in xa_ops(0):
        a.emit(grp)
    a("s_waitcnt vmcnt(5)")
    a.emit(a_reads(0))

    def phase1(p, head):
        EA, PE = V_EA[p], V_PE[p]
        Jn, Sn, PEn = V_J[1 - p], V_S[1 - p], V_PE[1 - p]
        tag = "h" if head else str(p)
        a.ds = ["a0", "a1", "a2", "a3"]
        a(f"s_cmp_lg_u32 s{S_I}, s{S_NA}")
        a(f"s_cbranch_scc1 L_noxb{tag}")
        for i in range(8):
            a(f"v_swap_b32 v{V_XB+i}, v{V_XB2+i}")
        a(f"L_noxb{tag}:")
        a(f"s_add_u32 s{S_P2}, s{S_P2}, 128")
        a(f"s_add_u32 s{S_TMP}, s{S_I}, 2")
        a(f"s_cmp_eq_u32 s{S_TMP}, s{S_NA}")
        a(f"s_cselect_b32 s{S_P2}, s{S_BB}, s{S_P2}")
        a(f"s_cmp_lt_u32 s{S_TMP}, s{S_NT}")
        a(f"s_cselect_b32 s{S_EOFF}, 0, {OOB}")
        sl = [[] for _ in range(8)]
        sl[0] = [f"v_add_u32 v{V_T+4}, s{S_P2}, v{V_LG}", f"v_add_u32 v{PE}, s{S_P2}, v{V_LE}",
                 lambda: a.dsop(f"ds_read_b128 {vr(V_G4,4)}, v{V_T+4} offset:{2*PL}", "g4"),
                 lambda: a.dsop(f"ds_read_b32 v{V_T+5}, v{PE}", "e2")]
        if not head:
            sl[0].append(mfs(ACC0, PRE0 + 8, V_SO + 4, ACC0))
        sl[1] = [mfs(PRE0, V_XA, V_XB, None)]
        sl[2] = [lambda: a.dsop(f"ds_read_b32 v{Jn}, v{PEn}", "c0"),
                 lambda: a.dsop(f"ds_read_b32 v{Sn+1}, v{PEn} offset:{PL}", "c1"),
                 lambda: a.dsop(f"ds_read_b32 v{Sn}, v{PEn} offset:{2*PL}", "c2"),
                 mfs(PRE0, EA, V_W3, PRE0)]
        sl[3] = [lambda: a.wait_ds("e2")] + h_addr(V_G4) + [mfs(PRE0, V_A, V_W2, PRE0)]
        for q in range(3):
            sl[4 + q] = h_dma(V_G4, p, q, f"s{S_EOFF}", mfs(PRE0, V_A + 4 + 4 * q, V_W2 + 8 + 8 * q, PRE0))
        sl[7] = h_dma(V_G4, p, 3, f"s{S_EOFF}", "s_nop 7" if head else mfs(ACC1, PRE1, V_SO, ACC1))
        if head:
            for grp in sl:
                a.emit(grp)
        else:
            phase(PRE1, sl)

    if cfg.get("late7"):
        stamp(7)
    phase1(0, True)
    a("s_branch L_ph2")
    a("L_tile:")
    for p in range(2):
        EA, J, S = V_EA[p], V_J[p], V_S[p]
        phase1(p, False)
        if p == 0:
            a("L_ph2:")
        o1, o2, o3, o4 = xa_ops(1 - p)
        sl = [[] for _ in range(8)]
        sl[0] = [f"s_add_u32 s{S_I}, s{S_I}, 1", f"v_and_or_b32 v{V_T+5}, v{V_T+5}, s{S_M32}, v{V_HF16}",
                 mfs(ACC1, PRE1 + 8, V_SO + 4, ACC1)]
        sl[1] = [mfs(PRE1, V_XA, V_XB + 4, None)]
        sl[2] = [f"s_mov_b64 exec, {sr(S_LO32,2)}",
                 lambda: a.dsop(f"ds_write_b64 v{J}, {vr(S,2)}"),
                 "s_mov_b64 exec, -1",
                 lambda: a.dsop(f"ds_read_b64_tr_b16 {vr(V_SO,2)}, v{V_STR}", "s0"),
                 lambda: a.dsop(f"ds_read_b64_tr_b16 {vr(V_SO+2,2)}, v{V_STR} offset:512", "s1"),
                 lambda: a.dsop(f"ds_read_b64_tr_b16 {vr(V_SO+4,2)}, v{V_STR} offset:1024", "s2"),
                 lambda: a.dsop(f"ds_read_b64_tr_b16 {vr(V_SO+6,2)}, v{V_STR} offset:1536", "s3"),
                 f"s_mov_b64 exec, {sr(S_LO32,2)}",
                 lambda: a.dsop(f"ds_write2_b32 v{J}, v{V_ZERO}, v{V_ZERO} offset0:0 offset1:1"),
                 "s_mov_b64 exec, -1",
                 lambda: a.wait_ds("c2")] + o1 + [mfs(PRE1, EA, V_W3 + 4, PRE1)]

        def swap_acc(p=p):
            a(f"s_sub_u32 s{S_TMP}, s{S_I}, 1")
            a(f"s_cmp_lg_u32 s{S_TMP}, s{S_NA}")
            a(f"s_cbranch_scc1 L_noacc{p}")
            for i in range(32):
                a(f"v_swap_b32 v{ACC0+i}, v{SAV0+i}")
            a(f"L_noacc{p}:")
        sl[3] = [f"buffer_load_dwordx4 {vr(EA,4)}, v{V_T+5}, {sr(S_EA)}, s{S_EOFF} offen {eaf}"] + o2 + \
                [mfs(PRE1, V_A, V_W2 + 4, PRE1)]
        sl[4] = o3 + [mfs(PRE1, V_A + 4, V_W2 + 12, PRE1)]
        sl[5] = [swap_acc] + o4 + [mfs(PRE1, V_A + 8, V_W2 + 20, PRE1)]
        sl[6] = [mfs(PRE1, V_A + 12, V_W2 + 28, PRE1)]

        def prio(p=p):
            if cfg.get("prio", 1):
                a(f"s_sub_u32 s{S_TMP}, s{S_NT}, s{S_I}")
                a(f"s_cmp_gt_u32 s{S_TMP}, {cfg.get('prioth', 3)}")
                a(f"s_cbranch_scc1 L_pr{p}")
                a("s_setprio 2")
                a(f"s_cmp_gt_u32 s{S_TMP}, 1")
                a(f"s_cbranch_scc1 L_pr{p}")
                a("s_setprio 1")
                a(f"s_cmp_gt_u32 s{S_TMP}, 0")
                a(f"s_cbranch_scc1 L_pr{p}")
                a("s_setprio 0")
                a(f"L_pr{p}:")
        sl[7] = [prio, "s_waitcnt vmcnt(5)"] + a_reads(1 - p) + [mfs(ACC0, PRE0, V_SO, ACC0)]
        phase(PRE0, sl)
        a(f"s_cmp_lg_u32 s{S_I}, s{S_NT}")
        a("s_cbranch_scc1 L_tile" if p else "s_cbranch_scc0 L_tail")

    AD, HD, WX = 32, 80, 96
    a("L_tail:")
    if cfg.get("noh"):
        a(f"s_mov_b32 s{S_H+2}, {N*128}")
    a("s_waitcnt vmcnt(0) lgkmcnt(0)")
    a(f"s_sub_u32 s{S_X}, s{S_WB}, s{S_WA}")
    a(f"s_add_u32 s{S_TMP2}, s{S_NB0}, s{S_WA}")
    a(f"v_lshrrev_b32 v20, 1, v{V_HF16}")
    for s in range(4):
        a(f"buffer_load_dwordx2 {vr(WX+4*s,2)}, v20, {sr(S_WX)}, 0 offen offset:{32*s}")
        a(f"buffer_load_dwordx2 {vr(WX+4*s+2,2)}, v20, {sr(S_WX)}, 0 offen offset:{32*s+16}")
    a(f"v_bfe_u32 v22, v{LANE}, 2, 3")
    a(f"v_and_b32 v21, 1, v{LANE}")
    a(f"v_lshl_add_u32 v20, v22, 4, s{S_TMP2}")
    a(f"v_mad_i32_i24 v20, v21, s{S_X}, v20")
    a(f"v_lshl_add_u32 v20, v20, 7, v{V_HF16}")
    for s in range(4):
        a(f"buffer_load_dwordx4 {vr(V_A+4*s,4)}, v20, {sr(S_H)}, 0 offen offset:{32*s}")
    a(f"v_mov_b32 v23, {OOB}")
    a(f"v_lshrrev_b32 v21, 4, v{V_HF16}")
    a(f"v_lshl_add_u32 v22, v22, 4, s{S_WA}")
    a(f"v_mad_i32_i24 v22, v21, s{S_X}, v22")
    a(f"v_and_b32 v21, 3, v{LANE}")
    a(f"v_cmp_gt_u32 vcc, s{S_NN}, v22")
    a(f"v_cmp_ne_u32 {sr(S_Y,2)}, 0, v21")
    a(f"v_mad_u32_u24 v22, v22, 6, s{S_NB6}")
    a(f"v_lshl_add_u32 v22, v21, 1, v22")
    a(f"s_and_b64 vcc, vcc, {sr(S_Y,2)}")
    a(f"v_add_u32 v22, -2, v22")
    a(f"v_cndmask_b32 v30, v23, v22, vcc")
    a(f"buffer_load_short_d16_hi v31, v30, {sr(S_POS)}, 0 offen")
    a(f"v_and_b32 v22, 31, v{LANE}")
    for w in range(2):
        a(f"v_add_u32 v24, s{S_WB if w else S_WA}, v{V_HF16}")
        a(f"v_add_u32 v26, s{S_NB0}, v24")
        a(f"v_lshlrev_b32 v26, 7, v26")
        a(f"v_lshl_add_u32 v26, v22, 1, v26")
        for q in range(4):
            a(f"v_add_u32 v27, {32*q}, v24")
            a(f"v_cmp_gt_u32 vcc, s{S_NN}, v27")
            a(f"v_add_u32 v27, {4096*q}, v26")
            a("s_nop 0")
            a(f"v_cndmask_b32 v{AD+4*w+q}, v23, v27, vcc")
            for nt in range(2):
                a(f"buffer_load_short_d16_hi v{HD+8*w+2*q+nt}, v{AD+4*w+q}, {sr(S_H)}, 0 offen offset:{64*nt}")
    a(f"s_cmp_eq_u32 s{S_NT}, 0")
    a("s_cbranch_scc1 L_tilesdone")
    sl = [[] for _ in range(8)]
    sl[0] = [mfs(ACC0, PRE0 + 8, V_SO + 4, ACC0)]
    sl[7] = [mfs(ACC1, PRE1, V_SO, ACC1)]
    phase(PRE1, sl)
    a(f"s_cmp_eq_u32 s{S_NA}, s{S_NT}")
    a("s_nop 0")
    mfma(ACC1, PRE1 + 8, V_SO + 4, ACC1)
    a("s_cbranch_scc1 L_tilesdone")
    for i in range(32):
        a(f"v_swap_b32 v{ACC0+i}, v{SAV0+i}")
    a("L_tilesdone:")
    a(f"s_cmp_eq_u32 s{S_CN}, 256")
    a("s_cbranch_scc1 L_epi")
    a(f"s_add_u32 s{S_SB}, s{S_SB}, 32")
    a("s_waitcnt vmcnt(0)")
    a(f"s_cmp_lg_u32 s{S_FLAG}, 0")
    a("s_cbranch_scc1 L_batch")
    a(f"s_mov_b32 s{S_SB}, 0")
    a(f"s_add_u32 s{S_CLO}, s{S_CLO}, 8")
    a(f"s_cmp_lt_u32 s{S_CLO}, 256")
    a("s_cbranch_scc1 L_batch")

    a("L_epi:")
    stamp(8)
    a(f"v_add_u32 v20, {L_WH}, v{V_TRN}")
    a(f"v_lshlrev_b32 v21, 5, v{V_HF16}")
    a(f"v_sub_u32 v21, v20, v21")
    BQ = [40, 44, 48, 68]
    a.ds = []
    seq = [(4 + s, nt) for s in range(4) for nt in range(2)] + [(s, nt) for s in range(4) for nt in range(2)]

    def wh_read(i):
        s, nt = seq[i]
        q = BQ[i & 3]
        if s >= 4:
            off = (s - 4) * 2048 + nt * 64
            a.dsop(f"ds_read_b64_tr_b16 {vr(q,2)}, v20 offset:{off}")
            a.dsop(f"ds_read_b64_tr_b16 {vr(q+2,2)}, v20 offset:{off+512}", f"w{i}")
        else:
            off = 8192 + s * 2048 + nt * 64
            a.dsop(f"ds_read_b64_tr_b16 {vr(q,2)}, v21 offset:{off}")
            a.dsop(f"ds_read_b64_tr_b16 {vr(q+2,2)}, v21 offset:{off+1024}", f"w{i}")
    for i in range(3):
        wh_read(i)
    PA = [ACC0, ACC0 + 4, ACC1, ACC1 + 4]
    PB = [SAV0, SAV0 + 4, SAV1, SAV1 + 4]
    U3A, U3B = 112, 232
    a(f"s_mov_b32 s{S_TMP}, 0xbf317218")
    pack = []
    for AC in (ACC0, ACC1, SAV0, SAV1):
        for k in range(8):
            pack.append([f"v_mul_f32 v{AC+2*k}, s{S_TMP}, v{AC+2*k}", f"v_mul_f32 v{AC+2*k+1}, s{S_TMP}, v{AC+2*k+1}",
                         f"v_cvt_pk_bf16_f32 v{AC+k}, v{AC+2*k}, v{AC+2*k+1}"])
    a("s_nop 3")
    a("s_waitcnt vmcnt(17)")
    for i, (s, nt) in enumerate(seq):
        if i == 8:
            for s3 in range(4):
                mfma(U3A, WX + 4 * s3, PA[s3], None if s3 == 0 else U3A)
                mfma(U3B, WX + 4 * s3, PB[s3], None if s3 == 0 else U3B)
            a("s_mov_b32 vcc_lo, 0xdddddddd")
            a("s_mov_b32 vcc_hi, 0xdddddddd")
            for s3 in range(4):
                for k in range(4):
                    a(f"v_cndmask_b32_dpp v{PA[s3]+k}, v{PB[s3]+k}, v{PA[s3]+k}, vcc quad_perm:[0,0,0,0] row_mask:0xf bank_mask:0xf")
        if i + 3 < len(seq):
            wh_read(i + 3)
        a.wait_ds(f"w{i}")
        U = PRE1 if nt else PRE0
        mfma(U, PA[s] if s < 4 else V_A + 4 * (s - 4), BQ[i & 3], None if i < 2 else U)
        if i < 8:
            for grp in pack[4 * i: 4 * i + 4]:
                a.emit(grp)
    a(f"v_cndmask_b32 v28, v{U3A}, v{U3B}, {sr(S_HIM,2)}")
    a("s_waitcnt vmcnt(0)")
    a("v_add_f32 v28, v28, v31")
    a("v_cvt_pk_bf16_f32 v28, v28, v28")
    a(f"s_mov_b32 s{S_TMP}, {N*128}")
    a(f"buffer_store_short v28, v30, {sr(S_OUT)}, s{S_TMP} offen")
    a("s_nop 5")
    for w in range(2):
        U = [(PRE1 if nt else PRE0) + 4 * q + w for q in range(4) for nt in range(2)]
        T = 40 + 8 * w
        for i in range(8):
            a(f"v_mul_f32 v{T+i}, s{S_LOG}, v{U[i]}")
        for i in range(8):
            a(f"v_exp_f32 v{T+i}, v{T+i}")
        for i in range(8):
            a(f"v_add_f32 v{T+i}, 1.0, v{T+i}")
        for i in range(8):
            a(f"v_rcp_f32 v{T+i}, v{T+i}")
        for i in range(8):
            a(f"v_fma_f32 v{HD+8*w+i}, v{U[i]}, v{T+i}, v{HD+8*w+i}")
        for i in range(8):
            a(f"v_cvt_pk_bf16_f32 v{HD+8*w+i}, v{HD+8*w+i}, v{HD+8*w+i}")
        for i in range(8):
            a(f"buffer_store_short v{HD+8*w+i}, v{AD+4*w+(i>>1)}, {sr(S_OUT)}, 0 offen offset:{64*(i&1)}")
    if cfg.get("stamps"):
        a("s_waitcnt vmcnt(0)")
        stamp(9)
        stamp(10, True)
        for i in range(12):
            a(f"v_writelane_b32 v40, s{90+i}, {i}")
        a(f"v_lshlrev_b32 v41, 2, v{LANE}")
        a("s_lshl_b32 s88, s2, 4")
        a(f"s_add_u32 s88, s88, s{S_WAVE}")
        a("s_lshl_b32 s88, s88, 6")
        a(f"s_add_u32 s88, s88, {0x1000000}")
        a("s_mov_b64 exec, 0xffff")
        a(f"buffer_store_dword v40, v41, {sr(S_WS)}, s88 offen")
    a("L_end:")
    a("s_endpgm")
    return a.text()


HEADER = open(os.path.join(os.path.dirname(os.path.abspath(__file__)), "header.txt")).read()


def build(cfg):
    out = HEADER
    out += f"; @launch grid=(256,1,1) block=(512,1,1) lds={LDS}\n"
    out += '.amdgcn_target "amdgcn-amd-amdhsa--gfx950"\n.text\n'
    out += f".globl {KN}\n.p2align 8\n.type {KN},@function\n" + kernel(cfg)
    out += f""".section .rodata,"a"
.p2align 6
.amdhsa_kernel {KN}
  .amdhsa_next_free_vgpr 256
  .amdhsa_next_free_sgpr {102 if cfg.get("stamps") else 88}
  .amdhsa_accum_offset 256
  .amdhsa_group_segment_fixed_size 0
  .amdhsa_kernarg_size 88
  .amdhsa_user_sgpr_count 2
  .amdhsa_user_sgpr_kernarg_segment_ptr 1
  .amdhsa_system_sgpr_workgroup_id_x 1
  .amdhsa_float_denorm_mode_32 3
.end_amdhsa_kernel
"""
    return out


if __name__ == "__main__":
    cfg = {}
    outp = "gather_scatter__cheap_equivariant_egnn__graph.s"
    for arg in sys.argv[1:]:
        if "=" in arg:
            k, v = arg.split("=", 1)
            cfg[k] = int(v) if v.lstrip("-").isdigit() else v
        else:
            outp = arg
    open(outp, "w").write(build(cfg))
    print("wrote", outp)
```

```python
import sys, os

N = 25000
E = 800000
NB = 98
CH = 3125
KN = "gather_scatter__cheap_equivariant_egnn__graph_kernel"
WS_EPOCH = 0
WS_TAB = 0x1000
WS_REC = 0x100000
REC_STRIDE = 19584
WS_SIZE = 268435456
OOB = 0x7FFFFFE0
SPIN_MAX = 400000

K1_STG, K1_CNT, K1_BASE, K1_W1 = 0x0000, 0x5000, 0x5400, 0x5800
NLATE = 22
L_STG = 0x00000
L_W1 = 0x08000
L_LIST = 0x10000
PL = 16640
L_SB = 0x1C400
L_WH = 0x20400
L_OWN = 0x24400
L_W2 = 0x24C00
L_CNT = 0x27480
L_FLAG = 0x274C0
L_T = 0x27500
L_WX = 0x27600
L_PD = 0x27700
LDS = 0x28000

S_H, S_POS, S_EA, S_WS, S_OUT, S_WE, S_WX, S_SRC, S_DST, S_WHD, S_DBG = range(16, 60, 4)
S_WAVE = 3
S_B, S_NB0, S_NN, S_CLO, S_CN, S_SB, S_NT, S_STG, S_TMP, S_TMP2 = range(60, 70)
S_C128, S_M32, S_TB, S_FLAG, S_EOFF, S_LOG, S_NB6, S_PD = range(70, 78)
S_WA, S_WB, S_NA, S_BB, S_I, S_P2 = range(78, 84)
S_N0, S_N1 = 84, 85
S_LEFT, S_SPIN = 86, 87
S_EOE, S_OWN = 13, 14
S_X, S_Y, S_HIM, S_LO32 = 4, 6, 8, 10

V_ZERO, V_CH0, V_CH1 = 0, 1, 2
V_HA = 3
V_SROW, V_STR, V_HF16, V_LG, V_LE, V_LANE, V_TID = 7, 8, 9, 10, 11, 12, 13
V_J = [14, 15]
V_S = [16, 18]
V_PE = [20, 21]
V_T = 22
V_G4 = 28
V_EA = [32, 36]
V_XA = 40
V_SO = 44
V_A = 52
V_TS = 68
V_TRN = 76
V_PF = 77
V_W2, V_W3, V_XB, V_XB2 = 80, 112, 120, 128
PRE0, PRE1 = 136, 152
ACC0, ACC1, SAV0, SAV1 = 168, 184, 200, 216


class Asm:
    def __init__(self):
        self.L = []
        self.ds = []

    def __call__(self, s):
        for line in s.split("\n"):
            line = line.strip()
            if line:
                self.L.append(line if line.endswith(":") else "    " + line)

    def emit(self, items):
        for it in items:
            it() if callable(it) else self(it)

    def dsop(self, s, tag=None):
        self(s)
        self.ds.append(tag)

    def wait_ds(self, *tags):
        idx = max(len(self.ds) - 1 - self.ds[::-1].index(t) for t in tags)
        n = len(self.ds) - 1 - idx
        assert n <= 15, n
        self(f"s_waitcnt lgkmcnt({n})")

    def srd(self, d, n):
        self(f"s_and_b32 s{d+1}, s{d+1}, 0xffff")
        self(f"s_mov_b32 s{d+2}, {n}")
        self(f"s_mov_b32 s{d+3}, 0x20000")

    def text(self):
        return "\n".join(self.L) + "\n"


def vr(a, n=1):
    return f"v{a}" if n == 1 else f"v[{a}:{a+n-1}]"


def sr(a, n=4):
    return f"s[{a}:{a+n-1}]"


def mfs(d, x, y, c):
    cs = "0" if c is None else vr(c, 16)
    return f"v_mfma_f32_32x32x16_bf16 {vr(d,16)}, {vr(x,4)}, {vr(y,4)}, {cs}"


def kernel(cfg):
    a = Asm()
    LANE, TID = V_LANE, V_TID
    eaf = cfg.get("ea_flag", "nt")
    npf = cfg.get("pf", 0)
    ST = cfg.get("st", "sc0 sc1")
    LD = cfg.get("ld", "sc1")
    LR = cfg.get("lr", "")

    smap = dict(kv.split(":") for kv in cfg["stp"].split(",")) if cfg.get("stp") else None

    def pt(name):
        if smap and name in smap:
            stamp(int(smap[name]), force=True)

    def stamp(i, real=False, force=False):
        if smap and not force and 2 <= i <= 8:
            return
        if cfg.get("stamps"):
            a("s_memrealtime s[88:89]" if real else "s_memtime s[88:89]")
            a("s_waitcnt lgkmcnt(0)")
            a(f"s_mov_b32 s{90+i}, s88")

    def timed(slot, items):
        if cfg.get("acc") != slot:
            return items
        return ["s_memtime s[88:89]", "s_waitcnt lgkmcnt(0)", "s_mov_b32 s12, s88"] + items + \
               ["s_memtime s[88:89]", "s_waitcnt lgkmcnt(0)", "s_sub_u32 s12, s88, s12", "s_add_u32 s93, s93, s12"]

    def mfma(d, x, y, c):
        a(mfs(d, x, y, c))

    def phase(x, slots):
        for g in range(4):
            y = x + 4 * g
            t = V_TS + 4 * (g & 1)
            a.emit(slots[2 * g])
            if not cfg.get("nosilu"):
                for i in range(4):
                    a(f"v_exp_f32 v{t+i}, v{y+i}")
                for i in (0, 2):
                    a(f"v_pk_add_f32 {vr(t+i,2)}, {vr(t+i,2)}, 1.0 op_sel_hi:[1,0]")
            a.emit(slots[2 * g + 1])
            if not cfg.get("nosilu"):
                for i in range(4):
                    a(f"v_rcp_f32 v{t+i}, v{t+i}")
                for i in (0, 2):
                    a(f"v_pk_mul_f32 {vr(t+i,2)}, {vr(y+i,2)}, {vr(t+i,2)}")
            d = x + 8 * (g >> 1) + 2 * (g & 1)
            a(f"v_cvt_pk_bf16_f32 v{d}, v{t}, v{t+1}")
            a(f"v_cvt_pk_bf16_f32 v{d+1}, v{t+2}, v{t+3}")

    pfk, pfa, pfb = cfg.get("pfk", 0), cfg.get("pfa", 0), cfg.get("pfb", 0)
    npfb = 1 if pfb else 0

    def warm_h(first, count, t, dst):
        if count:
            a(f"s_lshr_b32 s15, s2, 3")
            a(f"s_mul_i32 s15, s15, {782*128}")
            a(f"s_add_u32 s15, s15, {first*128}")
            a(f"v_lshl_add_u32 v{t}, v{LANE}, 3, s{S_WAVE}")
            a(f"v_lshlrev_b32 v{t}, 7, v{t}")
            n = count // 8
            a(f"s_mov_b32 exec_lo, {(1 << min(n, 32)) - 1:#x}")
            a(f"s_mov_b32 exec_hi, {(1 << max(n - 32, 0)) - 1:#x}")
            a(f"buffer_load_dword v{dst}, v{t}, {sr(S_H)}, s15 offen")
            a("s_mov_b64 exec, -1")

    a(f"{KN}:")
    a("s_cmp_ge_u32 s2, 256")
    a("s_cbranch_scc1 L_end")
    stamp(0, True)
    stamp(1)
    for srd, off in ((S_DST, 32), (S_SRC, 24), (S_WS, 80), (S_WE, 40), (S_POS, 8), (S_H, 0), (S_DBG, 72),
                     (S_EA, 16), (S_OUT, 64), (S_WX, 48), (S_WHD, 56)):
        a(f"s_load_dwordx2 {sr(srd,2)}, s[0:1], {off}")
    a("v_lshrrev_b32 v1, 6, v0")
    a(f"v_and_b32 v{LANE}, 63, v0")
    a(f"v_readfirstlane_b32 s{S_WAVE}, v1")
    a(f"v_mov_b32 v{TID}, v0")
    VL16, VT16 = 16, 17
    a(f"v_lshlrev_b32 v{VL16}, 4, v{LANE}")
    a(f"v_lshlrev_b32 v{VT16}, 4, v0")
    a(f"s_mul_i32 s{S_TMP}, s2, {CH*4}")
    a(f"s_add_u32 s{S_TMP2}, s{S_TMP}, 8192")
    a(f"v_cmp_gt_u32 vcc, 270, v0")
    a(f"v_mov_b32 v18, {OOB}")
    a(f"v_mov_b32 v{V_ZERO}, 0")
    a(f"v_cndmask_b32 v18, v18, v{VT16}, vcc")
    a(f"s_xor_b32 s{S_SPIN}, s{S_WAVE}, 7")
    a(f"s_or_b32 s{S_SPIN}, s{S_SPIN}, s2")
    a("s_waitcnt lgkmcnt(0)")
    a.srd(S_DST, E * 4)
    a.srd(S_SRC, E * 4)
    a(f"s_cmp_lg_u32 s{S_SPIN}, 0")
    a("s_cbranch_scc1 L_noepoch0")
    a.srd(S_WS, WS_SIZE)
    a(f"buffer_load_dwordx2 v[64:65], v{V_ZERO}, {sr(S_WS)}, 0 offen sc0 sc1" + (f" offset:{WS_EPOCH}" if WS_EPOCH else ""))
    a("L_noepoch0:")
    D, SR, BK, RKK = 20, 28, 36, 44
    a(f"buffer_load_dwordx4 {vr(D,4)}, v{VT16}, {sr(S_DST)}, s{S_TMP} offen nt")
    a(f"buffer_load_dwordx4 {vr(D+4,4)}, v18, {sr(S_DST)}, s{S_TMP2} offen nt")
    a(f"buffer_load_dwordx4 {vr(SR,4)}, v{VT16}, {sr(S_SRC)}, s{S_TMP} offen nt")
    a(f"buffer_load_dwordx4 {vr(SR+4,4)}, v18, {sr(S_SRC)}, s{S_TMP2} offen nt")
    a(f"s_cmp_lg_u32 s{S_WAVE}, 1")
    a("s_cbranch_scc1 L_nocnt")
    for i in range(4):
        a(f"v_mov_b32 v{60+i}, 0")
    a(f"ds_write_b128 v{VL16}, v[60:63] offset:{K1_CNT}")
    a("L_nocnt:")
    for srd, n in ((S_WS, WS_SIZE), (S_WE, 145 * 128), (S_POS, N * 6), (S_H, N * 128), (S_DBG, 256), (S_EA, E * 32),
                   (S_OUT, N * 134), (S_WX, 128), (S_WHD, 128 * 128)):
        a.srd(srd, n)
    a(f"s_and_b32 s{S_B}, s2, 7")
    a(f"s_lshl_b32 s{S_B}, s{S_B}, 5")
    a(f"s_lshr_b32 s{S_X}, s2, 3")
    a(f"s_add_u32 s{S_B}, s{S_B}, s{S_X}")
    a(f"s_mul_i32 s{S_NB0}, s{S_B}, {NB}")
    a(f"s_mul_i32 s{S_NB6}, s{S_NB0}, 6")
    a(f"s_sub_u32 s{S_NN}, {N}, s{S_NB0}")
    a(f"s_min_u32 s{S_NN}, s{S_NN}, {NB}")
    a(f"s_mov_b32 s{S_CLO}, 0")
    a(f"s_mov_b32 s{S_CN}, 256")
    a(f"s_mov_b32 s{S_SB}, 0")
    a(f"s_mov_b32 s{S_C128}, 128")
    a(f"s_mov_b32 s{S_M32}, 0xffffffe0")
    a(f"s_mov_b32 s{S_TB}, {L_T}")
    a(f"s_mov_b32 s{S_PD}, {L_PD}")
    a(f"s_mov_b32 s{S_LOG}, 0xbfb8aa3b")
    a(f"s_mov_b32 s{S_HIM}, 0")
    a(f"s_mov_b32 s{S_HIM+1}, -1")
    a(f"s_mov_b32 s{S_LO32}, -1")
    a(f"s_mov_b32 s{S_LO32+1}, 0")
    a(f"s_lshl_b32 s{S_STG}, s{S_WAVE}, 12")
    a(f"s_lshl_b32 s{S_OWN}, s{S_WAVE}, 7")
    a(f"s_add_u32 s{S_OWN}, s{S_OWN}, {L_OWN - 2*PL}")
    a(f"s_mov_b32 s{S_WA}, s{S_WAVE}")
    a(f"s_sub_u32 s{S_WB}, 15, s{S_WAVE}")
    a(f"v_mov_b32 v60, 270")
    a(f"v_cmp_gt_u32 {sr(S_X,2)}, v60, v{TID}")
    a(f"v_mov_b32 v60, 269")
    a(f"v_cmp_gt_u32 {sr(S_Y,2)}, v60, v{TID}")
    a(f"v_lshrrev_b32 v{V_HF16}, 5, v{LANE}")
    a(f"v_lshlrev_b32 v{V_HF16}, 4, v{V_HF16}")
    a(f"v_mov_b32 v59, 1")
    a(f"v_lshlrev_b32 v60, 7, v{TID}")
    a(f"s_mov_b32 s{S_TMP}, 42800")
    a(f"s_mov_b32 s{S_TMP2}, {-NB}")
    a(f"s_cmp_lg_u32 s{S_SPIN}, 0")
    a("s_cbranch_scc1 L_noepoch")
    a("s_mov_b64 exec, 1")
    a(f"s_waitcnt vmcnt(4)")
    a("v_add_u32 v64, 1, v64")
    a("v_and_b32 v67, 0x3ff, v65")
    a("v_mov_b32 v66, v64")
    a("v_or_b32 v67, 0x80000000, v67")
    a(f"buffer_store_dwordx2 v[66:67], v{V_ZERO}, {sr(S_DBG)}, 0 offen sc0 sc1")
    a(f"buffer_store_dword v64, v{V_ZERO}, {sr(S_WS)}, 0 offen sc0 sc1" + (f" offset:{WS_EPOCH}" if WS_EPOCH else ""))
    a("s_mov_b64 exec, -1")
    a("L_noepoch:")
    a(f"s_mov_b32 s{S_SPIN}, 0")
    a("s_waitcnt lgkmcnt(0)")
    a("s_barrier")
    pt("b1")
    for i in range(64):
        a(f"v_mov_b32 v{ACC0+i}, 0")
    a(f"s_waitcnt vmcnt(2)")
    stamp(2)
    pt("dst")

    def k1_mask(e):
        if e == 4:
            a(f"s_mov_b64 exec, {sr(S_X,2)}")
        if e == 5:
            a(f"s_mov_b64 exec, {sr(S_Y,2)}")
    for e in range(8):
        a(f"v_mul_u32_u24 v{BK+e}, s{S_TMP}, v{D+e}")
        a(f"v_lshrrev_b32 v{BK+e}, 22, v{BK+e}")
        a(f"v_mad_i32_i24 v{D+e}, v{BK+e}, s{S_TMP2}, v{D+e}")
        a(f"v_lshlrev_b32 v{BK+e}, 2, v{BK+e}")
        k1_mask(e)
        a(f"ds_add_rtn_u32 v{RKK+e}, v{BK+e}, v59 offset:{K1_CNT}")
    a("s_mov_b64 exec, -1")
    a(f"s_waitcnt vmcnt(0)")
    for e in range(8):
        a(f"v_lshl_or_b32 v{SR+e}, v{SR+e}, 17, v60")
        a(f"v_lshrrev_b32 v61, 2, v{D+e}")
        a(f"v_and_or_b32 v{SR+e}, v61, 28, v{SR+e}")
        if e < 7:
            a(f"v_add_u32 v60, {32 if e != 3 else 65536 - 96}, v60")
    a("s_waitcnt lgkmcnt(0)")
    pt("rank")
    a("s_barrier")
    pt("b2")
    C, G, BS = 232, 236, 240
    a(f"ds_read_b128 {vr(C,4)}, v{VL16} offset:{K1_CNT}")
    a(f"s_lshl_b32 s{S_I}, s{S_WAVE}, 10")
    a(f"s_add_u32 m0, s{S_I}, {L_W2}")
    a(f"s_add_u32 s{S_P2}, s{S_I}, 8192")
    a(f"buffer_load_dwordx4 v{VL16}, {sr(S_WE)}, s{S_P2} offen lds")
    if cfg.get("poswarm", 1):
        a(f"s_cmp_lt_u32 s{S_WAVE}, 4")
        a("s_cbranch_scc1 L_nopw")
        a(f"v_lshlrev_b32 v53, 7, v{LANE}")
        a(f"s_lshr_b32 s{S_TMP}, s2, 3")
        a(f"s_cmp_lt_u32 s{S_WAVE}, 6")
        a("s_cbranch_scc1 L_pw45")
        a(f"s_and_b32 s{S_TMP}, s{S_WAVE}, 1")
        a(f"s_mul_i32 s{S_TMP}, s{S_TMP}, 49")
        a(f"s_add_u32 s{S_TMP}, s{S_TMP}, s{S_NB0}")
        a(f"s_lshl_b32 s{S_TMP}, s{S_TMP}, 7")
        a(f"s_mov_b32 exec_hi, 0x1ffff")
        a(f"buffer_load_dword v56, v53, {sr(S_H)}, s{S_TMP} offen")
        a("s_branch L_pwdone")
        a("L_pw45:")
        a(f"s_cmp_eq_u32 s{S_WAVE}, 4")
        a("s_cbranch_scc1 L_pw4")
        a(f"s_mul_i32 s{S_TMP}, s{S_TMP}, {37*128}")
        a(f"s_mov_b32 exec_hi, 0x1f")
        a(f"buffer_load_dword v56, v53, {sr(S_POS)}, s{S_TMP} offen")
        a("s_branch L_pwdone")
        a("L_pw4:")
        a(f"s_lshl_b32 s{S_TMP}, s{S_TMP}, 9")
        a(f"s_mov_b64 exec, 15")
        a(f"buffer_load_dword v56, v53, {sr(S_WHD)}, s{S_TMP} offen")
        a(f"s_lshr_b32 s{S_TMP}, s{S_TMP}, 1")
        a(f"s_mov_b64 exec, 3")
        a(f"buffer_load_dword v57, v53, {sr(S_WE)}, s{S_TMP} offen")
        a("L_pwdone:")
        a("s_mov_b64 exec, -1")
        a("L_nopw:")
    a(f"s_cmp_ge_u32 s{S_WAVE}, 4")
    a("s_cbranch_scc1 L_nomisc")
    a(f"s_cmp_eq_u32 s{S_WAVE}, 3")
    a("s_cbranch_scc1 L_wxld")
    a(f"s_add_u32 m0, s{S_I}, {L_W2 + 8192}")
    a(f"s_add_u32 s{S_P2}, s{S_I}, 16384")
    a(f"s_cmp_eq_u32 s{S_WAVE}, 2")
    a(f"s_cselect_b64 exec, 0xff, -1")
    a(f"buffer_load_dwordx4 v{VL16}, {sr(S_WE)}, s{S_P2} offen lds")
    a("s_mov_b64 exec, -1")
    a(f"v_mad_u32_u24 v53, v{TID}, 6, s{S_NB6}")
    for i in range(3):
        a(f"buffer_load_short_d16_hi v{56+i}, v53, {sr(S_POS)}, 0 offen offset:{2*i}")
    a("s_branch L_nomisc")
    a("L_wxld:")
    a(f"v_lshlrev_b32 v53, 1, v{LANE}")
    a(f"buffer_load_short_d16_hi v56, v53, {sr(S_WX)}, 0 offen")
    a("L_nomisc:")
    warm_h(0, pfk, 52, 252)
    a("s_waitcnt lgkmcnt(0)")
    for k in range(4):
        a(f"v_add_u32 v{G+k}, 3, v{C+k}")
        a(f"v_lshrrev_b32 v{G+k}, 2, v{G+k}")
    a(f"v_add_u32 v{G+1}, v{G}, v{G+1}")
    a(f"v_add_u32 v{G+2}, v{G+1}, v{G+2}")
    a(f"v_add_u32 v{G+3}, v{G+2}, v{G+3}")
    a(f"v_mov_b32 v62, v{G+3}")
    dpps = [f"row_shr:{sh} row_mask:0xf bank_mask:0xf bound_ctrl:0" for sh in (1, 2, 4, 8)] + \
           ["row_bcast:15 row_mask:0xa bank_mask:0xf", "row_bcast:31 row_mask:0xc bank_mask:0xf"]
    for i in range(6):
        a("s_nop 1")
        a(f"v_add_u32_dpp v62, v62, v62 {dpps[i]}")
    a(f"v_sub_u32 v{BS}, v62, v{G+3}")
    a(f"v_readlane_b32 s{S_LEFT}, v62, 63")
    a(f"v_add_u32 v{BS+1}, v{BS}, v{G}")
    a(f"v_add_u32 v{BS+2}, v{BS}, v{G+1}")
    a(f"v_add_u32 v{BS+3}, v{BS}, v{G+2}")
    a(f"ds_write_b128 v{VL16}, {vr(BS,4)} offset:{K1_BASE}")
    for e in range(8):
        a(f"ds_read_b32 v{BK+e}, v{BK+e} offset:{K1_BASE}")
    a(f"buffer_load_dwordx2 v[54:55], v{V_ZERO}, {sr(S_DBG)}, 0 offen {LD}")
    for e in range(8):
        a(f"s_waitcnt lgkmcnt({7 + e})")
        a(f"v_lshl_add_u32 v{RKK+e}, v{BK+e}, 2, v{RKK+e}")
        a(f"v_and_b32 v{BK+e}, -4, v{RKK+e}")
        a(f"v_lshl_add_u32 v61, v{RKK+e}, 2, v{BK+e}")
        a(f"v_lshl_add_u32 v62, v{BK+e}, 2, v{RKK+e}")
        k1_mask(e)
        a(f"ds_write_b32 v61, v{SR+e}" + (f" offset:{K1_STG}" if K1_STG else ""))
        a(f"ds_write_b8 v62, v{D+e} offset:{K1_STG+16}")
    a("s_mov_b64 exec, -1")
    a(f"s_mul_i32 s{S_TMP}, s{S_LEFT}, 20")
    a(f"s_mul_i32 s{S_TMP2}, s2, {REC_STRIDE}")
    a(f"s_add_u32 s{S_TMP2}, s{S_TMP2}, {WS_REC}")
    a(f"v_mov_b32 v63, {OOB}")
    for i in range(3):
        a(f"v_add_u32 v{60+i}, {8192*i}, v{VT16}")
        a(f"v_cmp_gt_u32 vcc, s{S_TMP}, v{60+i}")
        a("s_nop 1")
        a(f"v_cndmask_b32 v{60+i}, v63, v{60+i}, vcc")
    a("s_waitcnt lgkmcnt(0)")
    pt("place")
    a("s_barrier")
    pt("b3")
    for i in range(3):
        a(f"ds_read_b128 {vr(20+4*i,4)}, v{VT16} offset:{K1_STG + 8192*i}")
    for i in range(3):
        a(f"s_waitcnt lgkmcnt({2-i})")
        a(f"buffer_store_dwordx4 {vr(20+4*i,4)}, v{60+i}, {sr(S_WS)}, s{S_TMP2} offen {ST}")
    pt("stored")

    def cursor_init(tag):
        a(f"s_cmp_lg_u32 s{S_WAVE}, 4")
        a(f"s_cbranch_scc1 L_noinit{tag}")
        a(f"v_lshrrev_b32 v60, 2, v{LANE}")
        a(f"v_and_b32 v61, 3, v{LANE}")
        a(f"v_lshrrev_b32 v62, 1, v60")
        a(f"v_cmp_eq_u32 vcc, v61, v62")
        a(f"v_and_b32 v62, 1, v60")
        a(f"v_lshlrev_b32 v62, 4, v62")
        a(f"v_mov_b32 v63, 0x3f80")
        a(f"v_lshlrev_b32 v62, v62, v63")
        a(f"v_cndmask_b32 v62, 0, v62, vcc")
        a(f"v_cmp_gt_u32 vcc, 7, v60")
        a(f"v_lshlrev_b32 v61, 2, v{LANE}")
        a(f"v_add_u32 v61, {L_CNT}, v61")
        a(f"v_cndmask_b32 v62, 0, v62, vcc")
        a(f"v_min_u32 v63, 2, v{LANE}")
        a(f"v_lshlrev_b32 v63, 7, v63")
        a(f"v_lshl_add_u32 v63, v{LANE}, 10, v63")
        a(f"v_cmp_gt_u32 vcc, 16, v{LANE}")
        a(f"v_add_u32 v63, {L_LIST}, v63")
        a("s_nop 0")
        a(f"v_cndmask_b32 v63, 0, v63, vcc")
        a("s_mov_b64 exec, 0xffffffff")
        a(f"ds_write_b32 v61, v63")
        a(f"ds_write_b32 v61, v62 offset:{L_T-L_CNT}")
        a("s_mov_b64 exec, -1")
        a(f"L_noinit{tag}:")
    cursor_init("0")
    a(f"v_lshrrev_b32 v60, 4, v{LANE}")
    a(f"v_and_b32 v61, 7, v{LANE}")
    a(f"v_xor_b32 v60, v60, v61")
    a(f"v_lshlrev_b32 v{V_CH0}, 4, v60")
    a(f"v_xor_b32 v{V_CH1}, 64, v{V_CH0}")
    a(f"v_and_b32 v60, 31, v{LANE}")
    a(f"v_bfe_u32 v61, v60, 1, 3")
    a(f"v_lshlrev_b32 v61, 4, v61")
    a(f"v_xor_b32 v61, v61, v{V_HF16}")
    a(f"v_lshl_add_u32 v61, v60, 7, v61")
    a(f"v_add_u32 v{V_HA}, s{S_STG}, v61")
    for s in range(1, 4):
        a(f"v_xor_b32 v{V_HA+s}, {32*s}, v{V_HA}")
    a(f"s_lshl_b32 s{S_TMP}, s{S_WAVE}, 11")
    a(f"s_add_u32 s{S_TMP}, s{S_TMP}, {L_SB}")
    a(f"v_lshl_add_u32 v{V_SROW}, v60, 6, s{S_TMP}")
    a(f"v_bfe_u32 v61, v{LANE}, 4, 1")
    a(f"v_and_b32 v62, 3, v{LANE}")
    a(f"v_lshlrev_b32 v62, 3, v62")
    a(f"v_lshl_add_u32 v62, v61, 5, v62")
    a(f"v_bfe_u32 v61, v{LANE}, 2, 2")
    a(f"v_lshl_add_u32 v63, v61, 6, v62")
    a(f"v_lshl_add_u32 v63, v{V_HF16}, 4, v63")
    a(f"v_add_u32 v{V_STR}, s{S_TMP}, v63")
    a(f"v_lshl_add_u32 v63, v61, 7, v62")
    a(f"v_lshl_add_u32 v{V_TRN}, v{V_HF16}, 6, v63")
    a(f"v_lshrrev_b32 v{V_LG}, 3, v{LANE}")
    a(f"v_lshlrev_b32 v{V_LG}, 4, v{V_LG}")
    a(f"v_and_b32 v61, 7, v{LANE}")
    a(f"v_bfe_u32 v62, v{LANE}, 3, 2")
    a(f"v_lshl_add_u32 v61, v61, 2, v62")
    a(f"v_lshlrev_b32 v{V_LE}, 2, v61")
    a(f"s_add_u32 s{S_TMP}, s{S_I}, {L_W2}")
    a(f"v_add_u32 v61, s{S_TMP}, v{VL16}")
    a(f"s_waitcnt vmcnt(3)")
    a(f"ds_read_b128 v[64:67], v61")
    a(f"ds_read_b128 v[68:71], v61 offset:8192")

    def scale(r):
        return [f"v_lshlrev_b32 v63, 16, v{r}", f"v_and_b32 v{r}, 0xffff0000, v{r}",
                f"v_mul_f32 v63, s{S_LOG}, v63", f"v_mul_f32 v{r}, s{S_LOG}, v{r}",
                f"v_cvt_pk_bf16_f32 v{r}, v63, v{r}"]
    a("s_waitcnt lgkmcnt(1)")
    for i in range(4):
        a.emit(scale(64 + i))
    a(f"ds_write_b128 v61, v[64:67]")
    a(f"s_cmp_ge_u32 s{S_WAVE}, 4")
    a("s_cbranch_scc1 L_notab")
    a(f"s_cmp_eq_u32 s{S_WAVE}, 3")
    a("s_cbranch_scc1 L_wxst")
    a("s_waitcnt lgkmcnt(1)")
    for i in range(4):
        a.emit(scale(68 + i))
    a(f"s_cmp_eq_u32 s{S_WAVE}, 0")
    a(f"s_cselect_b32 exec_lo, 0xffffff00, -1")
    a(f"s_cmp_eq_u32 s{S_WAVE}, 2")
    a(f"s_cselect_b64 exec, 0xff, exec")
    a(f"ds_write_b128 v61, v[68:71] offset:8192")
    a("s_mov_b64 exec, -1")
    a("s_cbranch_scc1 L_notab")
    a(f"v_mov_b32 v59, 0")
    a(f"v_lshl_add_u32 v53, v{TID}, 4, s{S_PD}")
    a(f"ds_write_b128 v53, v[56:59]")
    a("s_branch L_notab")
    a("L_wxst:")
    a(f"v_lshlrev_b32 v53, 2, v{LANE}")
    a(f"v_add_u32 v53, {L_WX}, v53")
    a(f"ds_write_b32 v53, v56")
    a("L_notab:")
    pt("scaled")
    a(f"s_waitcnt vmcnt(0) lgkmcnt(0)")
    a("L_tagpoll:")
    a(f"v_readfirstlane_b32 s{S_N1}, v55")
    a(f"v_readfirstlane_b32 s{S_N0}, v54")
    a(f"s_cmp_lt_i32 s{S_N1}, 0")
    a("s_cbranch_scc1 L_tagok")
    a(f"s_add_u32 s{S_SPIN}, s{S_SPIN}, 1")
    a(f"s_cmp_gt_u32 s{S_SPIN}, {SPIN_MAX}")
    a("s_cbranch_scc1 L_end")
    a(f"buffer_load_dwordx2 v[54:55], v{V_ZERO}, {sr(S_DBG)}, 0 offen {LD}")
    a("s_waitcnt vmcnt(0)")
    a("s_branch L_tagpoll")
    a("L_tagok:")
    a(f"s_lshl_b32 s{S_N1}, s{S_N1}, 22")
    for k in range(4):
        a(f"v_lshl_or_b32 v{20+2*k}, v{C+k}, 10, v{BS+k}")
        a(f"v_or_b32 v{20+2*k}, s{S_N1}, v{20+2*k}")
        a(f"v_mov_b32 v{21+2*k}, s{S_N0}")
    a(f"s_lshl_b32 s{S_TMP}, s2, 3")
    a(f"s_add_u32 s{S_TMP}, s{S_TMP}, {WS_TAB}")
    a(f"s_add_u32 s{S_TMP2}, s{S_TMP}, 4096")
    a(f"v_lshlrev_b32 v28, 13, v{LANE}")
    stamp(3)
    pt("drained")
    a("s_barrier")
    pt("b4")
    for k in range(4):
        a(f"s_cmp_lg_u32 s{S_WAVE}, {k}")
        a(f"s_cbranch_scc1 L_nopub{k}")
        a(f"buffer_store_dwordx2 v[{20+2*k}:{21+2*k}], v28, {sr(S_WS)}, s{S_TMP if k < 2 else S_TMP2} offen offset:{2048*(k&1)} {ST}")
        a(f"L_nopub{k}:")
    NP1, NP2 = cfg.get("np1", 6), cfg.get("np2", 0)

    def pos_start():
        a(f"s_lshr_b32 s{S_TMP}, s2, 3")
        a(f"s_mul_i32 s{S_TMP}, s{S_TMP}, {4 * 16}")
        a(f"s_lshr_b32 s{S_TMP}, s{S_TMP}, 4")
        a(f"s_add_u32 s{S_TMP}, s{S_TMP}, {147 - 8 - 124}")
        a(f"s_add_u32 s{S_TMP}, s{S_TMP}, s{S_WAVE}")
        a(f"s_lshl_b32 s{S_EOFF}, s{S_TMP}, 10")

    def pos_piece():
        a(f"s_add_u32 s{S_EOFF}, s{S_EOFF}, 8192")
        a(f"s_sub_u32 s{S_TMP}, s{S_EOFF}, {147*1024}")
        a(f"s_cselect_b32 s{S_EOFF}, s{S_EOFF}, s{S_TMP}")
        a(f"s_mov_b32 m0, s{S_EOFF}")
        a("s_nop 0")
        a(f"buffer_load_dwordx4 v{VL16}, {sr(S_POS)}, s{S_EOFF} offen lds")

    def w23_reads():
        a(f"v_add_u32 v29, {L_W2}, v{V_TRN}")
        for o in range(10):
            off = (o >> 1) * 2048 + (o & 1) * 64 + (128 if o >= 8 else 0)
            a(f"ds_read_b64_tr_b16 {vr(V_W2+4*o,2)}, v29 offset:{off}")
            a(f"ds_read_b64_tr_b16 {vr(V_W2+4*o+2,2)}, v29 offset:{off+512}")

    def poll_addr():
        a(f"v_lshrrev_b32 v31, 1, v{TID}")
        a(f"v_lshlrev_b32 v30, 3, v31")
        a(f"s_lshl_b32 s{S_TMP2}, s{S_B}, 11")
        a(f"s_add_u32 s{S_TMP2}, s{S_TMP2}, {WS_TAB}")
    poll_ld = f"buffer_load_dwordx2 v[32:33], v30, {sr(S_WS)}, s{S_TMP2} offen {LD}"
    a("s_branch L_batch0")

    a("L_batch:")
    a("s_barrier")
    cursor_init("1")
    a(f"v_lshlrev_b32 v{VL16}, 4, v{LANE}")
    a("s_waitcnt lgkmcnt(0)")
    a("s_barrier")
    a("L_batch0:")
    pos_start()
    for i in range(NP1):
        pos_piece()
    poll_addr()
    pt("prepoll")
    a(poll_ld)
    w23_reads()
    for i in range(NP2):
        pos_piece()
    a(f"s_waitcnt vmcnt({NP2})")
    a("s_branch L_pollc")
    a("L_poll:")
    a(poll_ld)
    a("s_waitcnt vmcnt(0)")
    a("L_pollc:")
    a(f"v_and_b32 v29, 0xffc00000, v32")
    a(f"v_cmp_ne_u32 vcc, s{S_N0}, v33")
    a(f"v_cmp_ne_u32 {sr(S_X,2)}, s{S_N1}, v29")
    a(f"s_add_u32 s{S_SPIN}, s{S_SPIN}, 1")
    a(f"s_or_b64 vcc, vcc, {sr(S_X,2)}")
    a("s_cbranch_scc0 L_polled")
    a(f"s_cmp_gt_u32 s{S_SPIN}, {SPIN_MAX}")
    a("s_cbranch_scc0 L_poll")
    a("s_endpgm")
    a("L_polled:")
    stamp(4)
    pt("polled")
    VREM, VCB, VFOUR = 14, 15, 17
    a(f"v_subrev_u32 v22, s{S_CLO}, v31")
    a(f"v_cmp_gt_u32 vcc, s{S_CN}, v22")
    a(f"v_bfe_u32 v{VREM}, v32, 10, 12")
    a(f"v_and_b32 v20, 0x3ff, v32")
    a(f"v_cndmask_b32 v{VREM}, 0, v{VREM}, vcc")
    a(f"v_subrev_u32 v{VREM}, s{S_SB}, v{VREM}")
    a(f"v_and_b32 v22, 1, v{TID}")
    a(f"s_lshr_b32 s{S_TMP}, s{S_SB}, 2")
    a(f"v_add3_u32 v20, v20, v22, s{S_TMP}")
    a(f"v_mul_u32_u24 v20, 20, v20")
    a(f"s_mov_b32 s{S_TMP}, {REC_STRIDE}")
    a(f"v_mad_u32_u24 v20, v31, s{S_TMP}, v20")
    a(f"v_cmp_lt_i32 {sr(S_X,2)}, 32, v{VREM}")
    a(f"v_lshlrev_b32 v22, 2, v22")
    a(f"v_sub_u32 v{VREM}, v{VREM}, v22")
    a(f"v_mov_b32 v23, {OOB}")
    a(f"s_mov_b32 s{S_TMP}, {WS_REC}")
    for k in range(4):
        a(f"v_cmp_lt_i32 vcc, {8*k}, v{VREM}")
        a("s_nop 1")
        a(f"v_cndmask_b32 v{24+k}, v23, v20, vcc")
        a(f"buffer_load_dwordx4 {vr(V_A+4*k,4)}, v{24+k}, {sr(S_WS)}, s{S_TMP} offen offset:{40*k} {LR}")
        a(f"buffer_load_dword v{248+k}, v{24+k}, {sr(S_WS)}, s{S_TMP} offen offset:{40*k+16} {LR}")
    a(f"s_mov_b32 s{S_TMP}, 100000")
    a(f"v_mul_u32_u24 v{VCB}, s{S_TMP}, v31")
    a(f"v_mov_b32 v{VFOUR}, 4")
    a(f"s_cmp_eq_u64 {sr(S_X,2)}, 0")
    a("s_cbranch_scc1 L_noflag")
    a(f"v_mov_b32 v28, {L_FLAG}")
    a(f"ds_write_b32 v28, v{VFOUR}")
    a("L_noflag:")
    for i in range(NP1 + NP2, 18):
        pos_piece()
    a(f"s_cmp_ge_u32 s{S_WAVE}, 3")
    a("s_cbranch_scc1 L_posdone")
    pos_piece()
    a("L_posdone:")
    a(f"s_waitcnt vmcnt({18 - NP1 - NP2 + 4})")
    pt("recs")
    a(f"s_mov_b32 s{S_TMP}, {L_CNT}")
    ND = 6

    def el_regs(e):
        k = e % ND
        return PRE0 + e, PRE1 + e, 232 + e, V_A + e, 248 + (e >> 2), [20, 22, 24, 26, 68, 70][k], \
            [72, 73, 74, 75, 77, 78][k], 28 + 4 * k

    def el_mask(e):
        return f"v_cmp_lt_i32 vcc, {8*(e>>2) + (e&3)}, v{VREM}"

    def el_rank(e):
        E0, E1, E2, RK, B, ps, sh, pd = el_regs(e)
        a(f"v_bfe_u32 v{E1}, v{B}, {8*(e&3)}, 8")
        a(el_mask(e))
        a(f"v_lshrrev_b32 v{E2}, 17, v{RK}")
        a(f"v_and_b32 v{E0}, 0x1ffff, v{RK}")
        a(f"v_and_b32 v{RK}, 15, v{E1}")
        a(f"v_lshl_add_u32 v{RK}, v{RK}, 2, s{S_TMP}")
        a(f"s_mov_b64 exec, vcc")
        a.dsop(f"ds_add_rtn_u32 v{RK}, v{RK}, v{VFOUR}", f"rk{e}")
        a("s_mov_b64 exec, -1")
        a(f"v_add_u32 v{E0}, v{E0}, v{VCB}")

    def el_addr(e):
        E0, E1, E2, RK, B, ps, sh, pd = el_regs(e)
        a(f"v_mul_u32_u24 v{ps}, 6, v{E2}")
        a(f"v_lshl_add_u32 v{pd}, v{E1}, 4, s{S_PD}")
        a(f"v_lshlrev_b32 v{sh}, 3, v{ps}")
        a(f"v_and_b32 v{ps}, -4, v{ps}")

    def el_lookup(e, masked=True):
        E0, E1, E2, RK, B, ps, sh, pd = el_regs(e)
        if masked:
            a(el_mask(e))
            a("s_nop 0")
            a(f"s_mov_b64 exec, vcc")
        a.dsop(f"ds_read2_b32 {vr(ps,2)}, v{ps} offset0:0 offset1:1", f"ps{e}")
        a.dsop(f"ds_read_b128 {vr(pd,4)}, v{pd}", f"pd{e}")
        if masked:
            a("s_mov_b64 exec, -1")

    def el_post(e):
        E0, E1, E2, RK, B, ps, sh, pd = el_regs(e)
        a(f"v_alignbit_b32 v{ps}, v{ps+1}, v{ps}, v{sh}")
        a(f"v_lshrrev_b32 v{sh}, v{sh}, v{ps+1}")
        a(f"v_and_b32 v{ps+1}, 0xffff0000, v{ps}")
        a(f"v_lshlrev_b32 v{ps}, 16, v{ps}")
        a(f"v_lshlrev_b32 v{sh}, 16, v{sh}")
        a(f"v_pk_add_f32 {vr(pd,2)}, {vr(pd,2)}, {vr(ps,2)} neg_lo:[0,1] neg_hi:[0,1]")
        a(f"v_sub_f32 v{pd+2}, v{pd+2}, v{sh}")
        a(f"v_cvt_pk_bf16_f32 v{pd}, 0, v{pd}")
        a(f"v_cvt_pk_bf16_f32 v{E1}, v{pd+1}, v{pd+2}")
        a(f"v_or_b32 v{E2}, v{E2}, v{pd}")
    a.ds = []
    for e in range(12):
        if e == 8:
            a(f"s_waitcnt vmcnt({18 - NP1 - NP2})")
        el_rank(e)
        if e < ND:
            el_addr(e)
    pt("ranked")
    a("s_waitcnt vmcnt(0)")
    a("s_barrier")
    pt("be")
    stamp(5)
    warm_h(pfk, pfa, 18, 253)
    a.ds = []
    for e in range(ND):
        el_lookup(e, e >= 4)
    for e in range(12):
        a.wait_ds(f"pd{e}")
        el_post(e)
        if e + ND < 12:
            el_addr(e + ND)
            el_lookup(e + ND)

    for e in range(12, 16):
        a(el_mask(e))
        a("s_nop 0")
        a("s_cmp_eq_u64 vcc, 0")
        a("s_cbranch_scc1 L_g1skip")
        el_rank(e)
        el_addr(e)
        el_lookup(e)
        a("s_waitcnt lgkmcnt(0)")
        el_post(e)
    a("L_g1skip:")
    a(f"v_and_b32 v28, 15, v{LANE}")
    a(f"v_lshl_add_u32 v29, v28, 2, s{S_TMP}")
    a(f"v_mov_b32 v31, {L_FLAG}")
    a("s_waitcnt lgkmcnt(0)")
    pt("posted")
    a("s_barrier")
    pt("bg")
    for i in range(cfg.get("delay", 0)):
        a("s_sleep 16")
    a("ds_read_b32 v30, v29")
    a("ds_read_b32 v31, v31")

    def list_write(e):
        E0, E1, E2, RK = el_regs(e)[:4]
        a(el_mask(e))
        a("s_nop 0")
        if e >= 8:
            a("s_cmp_eq_u64 vcc, 0")
            a("s_cbranch_scc1 L_g1skip2")
        a(f"s_mov_b64 exec, vcc")
        a(f"ds_write_b32 v{RK}, v{E0}")
        a(f"ds_write_b32 v{RK}, v{E1} offset:{PL}")
        a(f"ds_write_b32 v{RK}, v{E2} offset:{2*PL}")
        a("s_mov_b64 exec, -1")
    list_write(0)
    list_write(1)
    a(f"s_lshl_b32 s{S_X}, s{S_WAVE}, 10")
    a(f"s_add_u32 m0, s{S_X}, {L_W1}")
    a("s_nop 0")
    a(f"buffer_load_dwordx4 v{VL16}, {sr(S_WE)}, s{S_X} offen lds")
    a(f"s_add_u32 m0, s{S_X}, {L_WH}")
    a(f"s_add_u32 s{S_X+1}, s{S_X}, 8192")
    a(f"buffer_load_dwordx4 v{VL16}, {sr(S_WHD)}, s{S_X} offen lds")
    a(f"s_add_u32 m0, s{S_X}, {L_WH + 8192}")
    a(f"v_min_u32 v34, 2, v28")
    a(f"buffer_load_dwordx4 v{VL16}, {sr(S_WHD)}, s{S_X+1} offen lds")
    a(f"v_lshlrev_b32 v34, 7, v34")
    a(f"v_lshl_add_u32 v34, v28, 10, v34")
    a(f"v_add_u32 v34, {L_LIST}, v34")
    a(f"v_cmp_gt_u32 vcc, 2, v28")
    a(f"v_mov_b32 v35, 1024")
    a(f"v_mov_b32 v29, 1152")
    a(f"v_cndmask_b32 v35, v35, v29, vcc")
    a("s_waitcnt lgkmcnt(6)")
    a(f"v_sub_u32 v30, v30, v34")
    a(f"v_readfirstlane_b32 s{S_FLAG}, v31")
    a(f"v_cmp_gt_u32 vcc, v30, v35")
    a(f"s_cmp_lg_u32 s{S_CN}, 256")
    a("s_cbranch_scc1 L_slow")
    a(f"s_cmp_lg_u64 vcc, 0")
    a(f"s_cselect_b32 s{S_TMP}, 1, s{S_FLAG}")
    a(f"s_cmp_eq_u32 s{S_TMP}, 0")
    a("s_cbranch_scc1 L_fits")
    a(f"s_mov_b32 s{S_CN}, 8")
    a("s_waitcnt vmcnt(0) lgkmcnt(0)")
    a("s_branch L_batch")
    a("L_fits:")
    pt("fits")
    if cfg.get("bal", 1):
        a(f"v_lshl_add_u32 v29, v30, 4, v28")
        a(f"v_mov_b32 v31, 0")
        a("s_nop 0")
        for k in range(1, 16):
            a(f"v_sub_co_u32_dpp v35, vcc, v29, v29 row_ror:{k} row_mask:0xf bank_mask:0xf")
            a("s_nop 1")
            a(f"v_addc_co_u32 v31, vcc, 0, v31, vcc")
        a(f"s_sub_u32 s{S_TMP}, 11, s{S_WAVE}")
        a(f"s_cmp_lt_u32 s{S_WAVE}, 4")
        a(f"s_cselect_b32 s{S_TMP}, s{S_WAVE}, s{S_TMP}")
        a(f"s_sub_u32 s{S_TMP2}, 15, s{S_TMP}")
        a(f"v_cmp_eq_u32 vcc, s{S_TMP}, v31")
        a(f"v_cmp_eq_u32 {sr(S_X,2)}, s{S_TMP2}, v31")
        a("s_nop 0")
        a(f"s_ff1_i32_b32 s{S_WA}, vcc_lo")
        a(f"s_ff1_i32_b32 s{S_WB}, s{S_X}")
    a("L_slow:")
    a(f"v_and_b32 v20, 7, v{LANE}")
    a(f"v_bfe_u32 v21, v{LANE}, 3, 1")
    a(f"s_sub_u32 s{S_X}, s{S_WB}, s{S_WA}")
    a(f"s_add_u32 s{S_TMP2}, s{S_NB0}, s{S_WA}")
    a(f"v_lshl_add_u32 v20, v20, 4, s{S_TMP2}")
    a(f"v_mad_i32_i24 v20, v21, s{S_X}, v20")
    a(f"v_lshl_add_u32 v20, v20, 7, v{V_HF16}")
    a(f"s_mov_b32 exec_lo, 0xffff")
    a(f"s_mov_b32 exec_hi, 0xffff")
    for s in range(4):
        a(f"buffer_load_dwordx4 {vr(V_XB+4*s,4)}, v20, {sr(S_H)}, 0 offen offset:{32*s}")
    a("s_mov_b64 exec, -1")
    warm_h(pfk + pfa, pfb, 18, 254)
    a(f"v_readlane_b32 s{S_X}, v30, s{S_WA}")
    a(f"v_readlane_b32 s{S_X+1}, v34, s{S_WA}")
    a(f"v_readlane_b32 s{S_Y}, v30, s{S_WB}")
    a(f"v_readlane_b32 s{S_BB}, v34, s{S_WB}")
    for e in range(2, 8):
        list_write(e)

    a(f"s_lshl_b32 s{S_TMP2}, s{S_WAVE}, 11")
    a(f"v_add_u32 v32, s{S_TMP2}, v{VL16}")
    a(f"v_add_u32 v32, {L_SB}, v32")
    for i in range(4):
        a(f"v_mov_b32 v{36+i}, 0")
    a(f"ds_write_b128 v32, v[36:39]")
    a(f"ds_write_b128 v32, v[36:39] offset:1024")
    a(f"s_cmp_eq_u32 s{S_Y}, 0")
    a(f"s_cselect_b32 s{S_TMP2}, s{S_WA}, s{S_WB}")
    a(f"s_cselect_b32 s{S_TMP}, s{S_WB}, s{S_WA}")
    a(f"s_sub_u32 s{S_TMP}, s{S_TMP}, s{S_TMP2}")
    a(f"v_bfe_u32 v28, v{LANE}, 2, 3")
    a(f"v_and_b32 v29, 1, v{LANE}")
    a(f"v_lshl_add_u32 v28, v28, 4, s{S_TMP2}")
    a(f"v_mad_i32_i24 v28, v29, s{S_TMP}, v28")
    a(f"v_and_b32 v29, 2, v{LANE}")
    a(f"v_lshl_add_u32 v29, v29, 8, v28")
    a(f"v_cmp_gt_u32 vcc, s{S_NN}, v29")
    a(f"v_add_u32 v28, s{S_NB0}, v28")
    a(f"v_mov_b32 v31, 0xffff")
    a(f"v_cndmask_b32 v28, v31, v28, vcc")
    a(f"v_add_u32 v29, s{S_OWN}, v{V_LE}")
    a(f"ds_write_b32 v29, v28 offset:{2*PL}")
    a(f"s_add_u32 s{S_NA}, s{S_X}, 124")
    a(f"s_lshr_b32 s{S_NA}, s{S_NA}, 7")
    a(f"s_add_u32 s{S_NT}, s{S_Y}, 124")
    a(f"s_lshr_b32 s{S_NT}, s{S_NT}, 7")
    a(f"v_mov_b32 v28, s{S_X}")
    a(f"v_mov_b32 v29, s{S_Y}")
    a(f"v_cndmask_b32 v28, v28, v29, {sr(S_HIM,2)}")
    a(f"v_mov_b32 v29, s{S_X+1}")
    a(f"v_mov_b32 v30, s{S_BB}")
    a(f"v_cndmask_b32 v29, v29, v30, {sr(S_HIM,2)}")
    a(f"v_and_b32 v30, 31, v{LANE}")
    a(f"v_add_u32 v33, 124, v28")
    a(f"v_lshl_add_u32 v28, v30, 2, v28")
    a(f"v_and_b32 v33, 0xffffff80, v33")
    a(f"v_cmp_gt_u32 vcc, v33, v28")
    a(f"v_add_u32 v29, v29, v28")
    a(f"v_mov_b32 v30, {OOB | 28}")
    a(f"s_add_u32 s{S_NT}, s{S_NT}, s{S_NA}")
    a("s_mov_b64 exec, vcc")
    a("ds_write_b32 v29, v30")
    a(f"ds_write_b32 v29, v{V_ZERO} offset:{PL}")
    a(f"ds_write_b32 v29, v31 offset:{2*PL}")
    a("s_mov_b64 exec, -1")

    def list_ptr(dst, prev, idx):
        a(f"s_cmp_eq_u32 s{S_NA}, {idx}")
        a(f"s_cselect_b32 s{dst}, s{S_BB}, s{prev}")
        a(f"s_cmp_eq_u32 s{S_NT}, {idx}")
        a(f"s_cselect_b32 s{dst}, s{S_OWN}, s{dst}")
    list_ptr(S_X + 1, S_X + 1, 0)
    a(f"s_add_u32 s{S_P2}, s{S_X+1}, 128")
    list_ptr(S_P2, S_P2, 1)
    a(f"v_add_u32 v{V_PE[0]}, s{S_X+1}, v{V_LE}")
    a(f"v_add_u32 v{V_PE[1]}, s{S_P2}, v{V_LE}")
    a(f"v_add_u32 v{V_T}, s{S_X+1}, v{V_LG}")
    a(f"v_add_u32 v{V_T+1}, s{S_P2}, v{V_LG}")
    for e in range(8, 16):
        list_write(e)
    a("L_g1skip2:")
    pt("listed")
    a("s_setprio 3")
    a(f"s_waitcnt lgkmcnt(0)")
    stamp(6)
    a("s_barrier")
    pt("bj")
    if not cfg.get("late7"):
        stamp(7)
    if cfg.get("acc"):
        a("s_mov_b32 s93, s91")
    if cfg.get("stamps"):
        a(f"s_mov_b32 s101, s{S_NT}")
    if cfg.get("noh"):
        a(f"s_mov_b32 s{S_H+2}, 0")
    if cfg.get("noea"):
        a(f"s_mov_b32 s{S_EA+2}, 0")

    def h_addr(G):
        return [f"v_mad_u32_u16 v{G+q}, v{G+q}, s{S_C128}, v{V_CH1 if q & 1 else V_CH0}" for q in range(4)]

    def h_dma(G, p, q, soff, mid="s_nop 0"):
        return [f"s_add_u32 m0, s{S_STG}, {p*32768+q*1024}", mid] + \
            timed(3, [f"buffer_load_dwordx4 v{G+q}, {sr(S_H)}, {soff} offen lds"])
    a.ds = []
    a.dsop(f"ds_read_b32 v{V_J[0]}, v{V_PE[0]}", "j0")
    a.dsop(f"ds_read_b128 {vr(V_G4,4)}, v{V_T} offset:{2*PL}", "g0")
    a.dsop(f"ds_read_b128 {vr(V_SO,4)}, v{V_T+1} offset:{2*PL}", "g1")
    a.dsop(f"ds_read_b32 v{V_T+5}, v{V_PE[1]}", "j1")
    a.dsop(f"ds_read_b32 v{V_S[0]+1}, v{V_PE[0]} offset:{PL}")
    a.dsop(f"ds_read_b32 v{V_S[0]}, v{V_PE[0]} offset:{2*PL}")
    a(f"s_cmp_gt_u32 s{S_NT}, 0")
    a(f"s_cselect_b32 s{S_X}, 0, {OOB}")
    a(f"s_cmp_gt_u32 s{S_NT}, 1")
    a(f"s_cselect_b32 s{S_EOE}, 0, {OOB}")
    a.wait_ds("g0")
    a.emit(h_addr(V_G4))
    a(f"v_and_or_b32 v{V_T+4}, v{V_J[0]}, s{S_M32}, v{V_HF16}")
    eafirst = cfg.get("eafirst", 0)
    if not eafirst:
        for q in range(4):
            a.emit(h_dma(V_G4, 0, q, "0"))
    a(f"buffer_load_dwordx4 {vr(V_EA[0],4)}, v{V_T+4}, {sr(S_EA)}, s{S_X} offen {'' if cfg.get('eak') else eaf}")
    W1R = [232 + 4 * o for o in range(6)] + [V_TS, V_TS + 4]
    a(f"s_waitcnt vmcnt({(5 if eafirst else 9) + npfb})")
    a("s_barrier")
    pt("bk1")
    if eafirst:
        for q in range(4):
            a.emit(h_dma(V_G4, 0, q, "0"))
    for o in range(8):
        off = L_W1 + (o >> 1) * 2048 + (o & 1) * 64
        a(f"ds_read_b64_tr_b16 {vr(W1R[o],2)}, v{V_TRN} offset:{off}")
        a(f"ds_read_b64_tr_b16 {vr(W1R[o]+2,2)}, v{V_TRN} offset:{off+512}")
    a(f"v_and_b32 v{V_T+2}, 31, v{LANE}")
    a(f"v_lshlrev_b32 v{V_T+2}, 1, v{V_T+2}")
    a(f"v_add_u32 v{V_T+2}, {L_W2 + 8192}, v{V_T+2}")
    a(f"ds_read_u16_d16_hi v{V_T}, v{V_T+2}")
    a(f"ds_read_u16_d16_hi v{V_T+1}, v{V_T+2} offset:64")
    a("s_waitcnt lgkmcnt(0)")
    a("s_barrier")
    pt("bk2")
    a.emit(h_addr(V_SO))
    a(f"v_and_or_b32 v{V_T+5}, v{V_T+5}, s{S_M32}, v{V_HF16}")
    for q in range(4):
        a.emit(h_dma(V_SO, 1, q, f"s{S_X}"))
    a(f"s_waitcnt vmcnt({9 + npfb})")
    for s in range(4):
        mfma(PRE0, V_XB + 4 * s, W1R[2 * s], None if s == 0 else PRE0)
        mfma(PRE1, V_XB + 4 * s, W1R[2 * s + 1], None if s == 0 else PRE1)
    a("s_nop 1")
    for nt in range(2):
        a(f"v_mul_f32 v{V_T+nt}, s{S_LOG}, v{V_T+nt}")
        a(f"v_cvt_pk_bf16_f32 v{V_T+2}, 0, v{V_T+nt}")
        a(f"v_sub_f32 v{V_T+nt}, v{V_T+nt}, v{V_T+2}")
        a(f"v_cvt_pk_bf16_f32 v{V_T+nt}, 0, v{V_T+nt}")
        a(f"v_cndmask_b32 v{V_T+nt}, v{V_T+2}, v{V_T+nt}, {sr(S_HIM,2)}")
    for w in range(2):
        for nt in range(2):
            P = (PRE1 if nt else PRE0) + 4 * w
            XB = (V_XB2 if w else V_XB) + 4 * nt
            for k in range(4):
                a(f"v_mul_f32 v{P+k}, s{S_LOG}, v{P+k}")
            for k in range(2):
                a(f"v_cvt_pk_bf16_f32 v{XB+k}, v{P+2*k}, v{P+2*k+1}")
                a(f"v_lshlrev_b32 v{V_T+2}, 16, v{XB+k}")
                a(f"v_and_b32 v{V_T+3}, 0xffff0000, v{XB+k}")
                a(f"v_sub_f32 v{V_T+2}, v{P+2*k}, v{V_T+2}")
                a(f"v_sub_f32 v{V_T+3}, v{P+2*k+1}, v{V_T+3}")
                a(f"v_cvt_pk_bf16_f32 v{XB+2+k}, v{V_T+2}, v{V_T+3}")
            a("s_nop 1")
            a(f"v_permlane32_swap_b32 v{XB}, v{XB+2}")
            a(f"v_permlane32_swap_b32 v{XB+1}, v{XB+3}")
            a("s_nop 0")
            a(f"v_and_b32 v{XB+3}, 0xffff, v{XB+3}")
            a(f"v_or_b32 v{XB+3}, v{XB+3}, v{V_T+nt}")
    pt("pdone")

    def xa_ops(p):
        J, S = V_J[p], V_S[p]
        t = V_T
        o1 = [f"v_and_b32 v{J}, 31, v{J}",
              f"v_lshl_add_u32 v{t+3}, v{J}, 2, s{S_TB}",
              lambda: a.dsop(f"ds_read_b128 {vr(V_XA,4)}, v{t+3}", "xa"),
              f"v_and_b32 v{t}, 0xffff0000, v{S}",
              f"v_lshlrev_b32 v{t+1}, 16, v{S+1}",
              f"v_and_b32 v{t+2}, 0xffff0000, v{S+1}"]
        o2 = [f"v_or_b32 v{S}, 0x3f80, v{t}"] + [f"v_mul_f32 v{t+i}, v{t+i}, v{t+i}" for i in range(3)]
        o3 = [f"v_cvt_pk_bf16_f32 v{t+i}, 0, v{t+i}" for i in range(3)] + [f"v_lshl_add_u32 v{J}, v{J}, 1, v{V_SROW}"]
        o4 = [f"v_add_f32 v{t}, v{t}, v{t+1}", f"v_add_f32 v{t}, v{t}, v{t+2}", f"v_cvt_pk_bf16_f32 v{t}, 0, v{t}",
              lambda: a.wait_ds("xa"), f"v_or_b32 v{V_XA+3}, v{V_XA+3}, v{t}"]
        return o1, o2, o3, o4

    def a_reads(p):
        return [(lambda s=s: a.dsop(f"ds_read_b128 {vr(V_A+4*s,4)}, v{V_HA+s} offset:{32768*p}", f"a{s}")) for s in range(4)]
    a.ds = []
    for grp in xa_ops(0):
        a.emit(grp)
    for i in range(4):
        a(f"v_mov_b32 v{PRE1+8+i}, 0")
        a(f"v_mov_b32 v{V_SO+4+i}, 0")
    a(f"s_mov_b32 s{S_I}, 0")
    a("s_waitcnt vmcnt(4)")
    a.emit(a_reads(0))
    a(f"s_cmp_lg_u32 s{S_NT}, 0")
    a("s_cbranch_scc1 L_head")
    for r in list(range(PRE0 + 8, PRE0 + 12)) + list(range(PRE1, PRE1 + 16)) + list(range(V_SO, V_SO + 4)):
        a(f"v_mov_b32 v{r}, 0")
    a("s_branch L_tail")
    a("L_head:")

    def phase1(p, head):
        EA, PE = V_EA[p], V_PE[p]
        Jn, Sn, PEn = V_J[1 - p], V_S[1 - p], V_PE[1 - p]
        tag = "h" if head else str(p)
        a.ds = ["a0", "a1", "a2", "a3"]
        eak = cfg.get("eak", 0)
        ld = f"buffer_load_dwordx4 {vr(V_EA[1-p],4)}, v{V_T+5}, {sr(S_EA)}, s{S_EOE} offen "
        if cfg.get("eamix"):
            a(ld + ("" if p else "nt"))
        elif eak:
            a(f"s_cmp_lt_u32 s{S_I}, {eak}")
            a(f"s_cbranch_scc1 L_ead{tag}")
            a(ld + "nt")
            a(f"s_branch L_eae{tag}")
            a(f"L_ead{tag}:")
            a(ld)
            a(f"L_eae{tag}:")
        else:
            a.emit(timed(2, [ld + eaf]))
        a(f"s_cmp_lg_u32 s{S_I}, s{S_NA}")
        a(f"s_cbranch_scc1 L_noxb{tag}")
        for i in range(8):
            a(f"v_swap_b32 v{V_XB+i}, v{V_XB2+i}")
        a(f"L_noxb{tag}:")
        a(f"s_add_u32 s{S_P2}, s{S_P2}, 128")
        a(f"s_add_u32 s{S_TMP}, s{S_I}, 2")
        list_ptr(S_P2, S_P2, f"s{S_TMP}")
        a(f"s_cmp_lt_u32 s{S_TMP}, s{S_NT}")
        a(f"s_cselect_b32 s{S_EOE}, 0, {OOB}")
        a(f"s_cmp_le_u32 s{S_TMP}, s{S_NT}")
        a(f"s_cselect_b32 s{S_EOFF}, 0, {OOB}")
        sl = [[] for _ in range(8)]
        sl[0] = [f"v_add_u32 v{V_T+4}, s{S_P2}, v{V_LG}", f"v_add_u32 v{PE}, s{S_P2}, v{V_LE}",
                 lambda: a.dsop(f"ds_read_b128 {vr(V_G4,4)}, v{V_T+4} offset:{2*PL}", "g4"),
                 lambda: a.dsop(f"ds_read_b32 v{V_T+5}, v{PE}", "e2")]
        if not head:
            sl[0].append(mfs(ACC0, PRE0 + 8, V_SO + 4, ACC0))
        sl[1] = [mfs(PRE0, V_XA, V_XB, None)]
        sl[2] = [lambda: a.dsop(f"ds_read_b32 v{Jn}, v{PEn}", "c0"),
                 lambda: a.dsop(f"ds_read_b32 v{Sn+1}, v{PEn} offset:{PL}", "c1"),
                 lambda: a.dsop(f"ds_read_b32 v{Sn}, v{PEn} offset:{2*PL}", "c2"),
                 lambda: a.wait_ds("a0"), mfs(PRE0, V_A, V_W2, PRE0)]
        sl[3] = [lambda: a.wait_ds("e2")] + h_addr(V_G4) + [mfs(PRE0, V_A + 4, V_W2 + 8, PRE0)]
        sl[4] = [f"v_and_or_b32 v{V_T+5}, v{V_T+5}, s{S_M32}, v{V_HF16}", mfs(PRE0, V_A + 8, V_W2 + 16, PRE0)]
        sl[5] = [mfs(PRE0, V_A + 12, V_W2 + 24, PRE0)]
        sl[6] = timed(1, ["s_waitcnt vmcnt(5)"]) + [mfs(PRE0, EA, V_W3, PRE0)]
        sl[7] = ["s_nop 7", "s_nop 1"] if head else [mfs(ACC1, PRE1, V_SO, ACC1)]
        if head:
            for grp in sl:
                a.emit(grp)
        else:
            phase(PRE1, sl)

    if cfg.get("late7"):
        stamp(7)
    pt("t0")
    phase1(0, True)
    pt("head")
    a("s_branch L_ph2")
    a(".p2align 6")
    for i in range(cfg.get("ao", 0)):
        a("s_nop 0")
    a("L_tile:")
    for p in range(2):
        EA, J, S = V_EA[p], V_J[p], V_S[p]
        phase1(p, False)
        if p == 0:
            a("L_ph2:")
        o1, o2, o3, o4 = xa_ops(1 - p)
        sl = [[] for _ in range(8)]
        sl[0] = [f"s_add_u32 s{S_I}, s{S_I}, 1", f"s_sub_u32 s{S_TMP2}, s{S_NT}, s{S_I}", mfs(ACC1, PRE1 + 8, V_SO + 4, ACC1)]
        sl[1] = [mfs(PRE1, V_XA, V_XB + 4, None)]
        sl[2] = [f"s_mov_b64 exec, {sr(S_LO32,2)}",
                 lambda: a.dsop(f"ds_write_b64 v{J}, {vr(S,2)}"),
                 "s_mov_b64 exec, -1",
                 lambda: a.dsop(f"ds_read_b64_tr_b16 {vr(V_SO,2)}, v{V_STR}", "s0"),
                 lambda: a.dsop(f"ds_read_b64_tr_b16 {vr(V_SO+2,2)}, v{V_STR} offset:512", "s1"),
                 lambda: a.dsop(f"ds_read_b64_tr_b16 {vr(V_SO+4,2)}, v{V_STR} offset:1024", "s2"),
                 lambda: a.dsop(f"ds_read_b64_tr_b16 {vr(V_SO+6,2)}, v{V_STR} offset:1536", "s3"),
                 f"s_mov_b64 exec, {sr(S_LO32,2)}",
                 lambda: a.dsop(f"ds_write2_b32 v{J}, v{V_ZERO}, v{V_ZERO} offset0:0 offset1:1"),
                 "s_mov_b64 exec, -1",
                 lambda: a.wait_ds("c2")] + o1 + [mfs(PRE1, EA, V_W3 + 4, PRE1)]

        def swap_acc(p=p):
            a(f"s_sub_u32 s{S_TMP}, s{S_I}, 1")
            a(f"s_cmp_lg_u32 s{S_TMP}, s{S_NA}")
            a(f"s_cbranch_scc1 L_noacc{p}")
            for i in range(32):
                a(f"v_swap_b32 v{ACC0+i}, v{SAV0+i}")
            a(f"L_noacc{p}:")
        mm = [mfs(PRE1, V_A + 4 * q, V_W2 + 4 + 8 * q, PRE1) for q in range(4)]
        pre = [o2, o3, [swap_acc] + o4, []]
        for q in range(4):
            sl[3 + q] = pre[q] + h_dma(V_G4, p, q, f"s{S_EOFF}", mm[q])

        def prio(p=p):
            if cfg.get("prio", 1):
                a(f"s_cmp_gt_u32 s{S_TMP2}, {cfg.get('prioth', 3)}")
                a(f"s_cbranch_scc1 L_pr{p}")
                a("s_setprio 2")
                a(f"s_cmp_gt_u32 s{S_TMP2}, 1")
                a(f"s_cbranch_scc1 L_pr{p}")
                a("s_setprio 1")
                a(f"s_cmp_gt_u32 s{S_TMP2}, 0")
                a(f"s_cbranch_scc1 L_pr{p}")
                a("s_setprio 0")
                a(f"L_pr{p}:")
        sl[7] = [prio, "s_waitcnt vmcnt(5)"] + timed(4, []) + a_reads(1 - p) + [mfs(ACC0, PRE0, V_SO, ACC0)]
        phase(PRE0, sl)
        a(f"s_cmp_lg_u32 s{S_I}, s{S_NT}")
        a("s_cbranch_scc1 L_tile" if p else "s_cbranch_scc0 L_tail")

    UH0, UH1 = 80, 96
    BQ = [112, 116, V_XA, V_G4]
    WXF = [V_A, 232]
    a("L_tail:")
    pt("tail")
    a.ds = ["a0", "a1", "a2", "a3"]
    a(f"v_add_u32 v20, {L_WH}, v{V_TRN}")
    a(f"v_lshlrev_b32 v21, 5, v{V_HF16}")
    a(f"v_sub_u32 v21, v20, v21")

    def wh_read(i):
        s, nt = (i & 7) >> 1, i & 1
        q = BQ[i & 3]
        if i < 8:
            off = s * 2048 + nt * 64
            a.dsop(f"ds_read_b64_tr_b16 {vr(q,2)}, v20 offset:{off}")
            a.dsop(f"ds_read_b64_tr_b16 {vr(q+2,2)}, v20 offset:{off+512}", f"w{i}")
        else:
            off = 8192 + s * 2048 + nt * 64
            a.dsop(f"ds_read_b64_tr_b16 {vr(q,2)}, v21 offset:{off}")
            a.dsop(f"ds_read_b64_tr_b16 {vr(q+2,2)}, v21 offset:{off+1024}", f"w{i}")

    def uh(i):
        U = UH1 if i & 1 else UH0
        return [lambda: a.wait_ds(f"w{i}"), mfs(U, V_A + 4 * (i >> 1), BQ[i & 3], None if i < 2 else U),
                lambda: wh_read(i + 4)]
    for i in range(4):
        wh_read(i)
    sl = [[] for _ in range(8)]
    sl[0] = [mfs(ACC0, PRE0 + 8, V_SO + 4, ACC0)]
    sl[1], sl[2], sl[3], sl[4], sl[5], sl[6] = uh(0), uh(1), uh(2) + uh(3), uh(4), uh(5) + uh(6), uh(7)
    sl[7] = [f"v_add_u32 v22, {L_WX}, v{V_HF16}", mfs(ACC1, PRE1, V_SO, ACC1)] + \
            [(lambda k=k: a.dsop(f"ds_read_b128 {vr(WXF[k>>2]+4*(k&3),4)}, v22 offset:{32*k}", f"x{k}")) for k in range(8)]
    phase(PRE1, sl)
    a(f"s_cmp_eq_u32 s{S_NA}, s{S_NT}")
    a("s_nop 0")
    mfma(ACC1, PRE1 + 8, V_SO + 4, ACC1)
    a(f"s_cselect_b32 s{S_TMP}, s{S_WA}, s{S_WB}")
    a(f"s_cselect_b32 s{S_WB}, s{S_WB}, s{S_WA}")
    a(f"s_mov_b32 s{S_WA}, s{S_TMP}")
    a("L_tilesdone:")
    a(f"s_cmp_eq_u32 s{S_CN}, 256")
    a("s_cbranch_scc1 L_epi")
    a(f"s_add_u32 s{S_SB}, s{S_SB}, 32")
    a("s_waitcnt vmcnt(0) lgkmcnt(0)")
    a(f"s_cmp_lg_u32 s{S_FLAG}, 0")
    a("s_cbranch_scc1 L_batch")
    a(f"s_mov_b32 s{S_SB}, 0")
    a(f"s_add_u32 s{S_CLO}, s{S_CLO}, 8")
    a(f"s_cmp_lt_u32 s{S_CLO}, 256")
    a("s_cbranch_scc1 L_batch")

    a("L_epi:")
    stamp(8)
    pt("epi")
    HD = V_XB
    a(f"s_and_b32 s{S_TMP}, s{S_NT}, 1")
    a(f"s_lshl_b32 s{S_TMP}, s{S_TMP}, 15")
    a(f"s_add_u32 s{S_TMP}, s{S_TMP}, s{S_STG}")
    a(f"v_bfe_u32 v22, v{LANE}, 3, 2")
    a(f"v_lshlrev_b32 v22, 4, v22")
    a(f"v_lshlrev_b32 v23, 1, v{V_HF16}")
    a(f"v_xor_b32 v22, v22, v23")
    a(f"v_and_b32 v23, 7, v{LANE}")
    a(f"v_lshl_add_u32 v22, v23, 1, v22")
    a(f"v_lshl_add_u32 v22, v{V_HF16}, 5, v22")
    a(f"v_add_u32 v22, s{S_TMP}, v22")

    def hd_off(w, q, nt):
        return 1024 * q + 128 * w + 64 * (nt ^ (q & 1))
    a(f"s_sub_u32 s{S_X}, s{S_WB}, s{S_WA}")
    a(f"v_bfe_u32 v24, v{LANE}, 2, 3")
    a(f"v_lshrrev_b32 v25, 4, v{V_HF16}")
    a(f"v_lshl_add_u32 v24, v24, 4, s{S_WA}")
    a(f"v_mad_i32_i24 v24, v25, s{S_X}, v24")
    a(f"v_and_b32 v25, 3, v{LANE}")
    a(f"v_lshl_add_u32 v26, v24, 4, s{S_PD}")
    a(f"v_lshl_add_u32 v26, v25, 2, v26")
    a(f"v_cmp_gt_u32 vcc, s{S_NN}, v24")
    a(f"v_cmp_ne_u32 {sr(S_Y,2)}, 0, v25")
    a(f"v_add_u32 v26, -4, v26")
    a(f"v_mad_u32_u24 v24, v24, 6, s{S_NB6}")
    a(f"v_lshl_add_u32 v24, v25, 1, v24")
    a(f"s_and_b64 vcc, vcc, {sr(S_Y,2)}")
    a(f"v_add_u32 v24, -2, v24")
    a(f"v_mov_b32 v23, {OOB}")
    a(f"v_cndmask_b32 v77, v23, v24, vcc")
    a("s_waitcnt lgkmcnt(0)")
    a.ds = []
    a.dsop(f"ds_read_b32 v78, v26", "pos")
    TA, TB = 24, 26
    for k in range(16):
        wx = WXF[k >> 3] + 2 * (k & 7)
        for T, AC in ((TA, ACC0), (TB, SAV0)):
            if k == 0:
                a(f"v_pk_mul_f32 {vr(T,2)}, {vr(AC,2)}, {vr(wx,2)}")
            else:
                a(f"v_pk_fma_f32 {vr(T,2)}, {vr(AC+2*k,2)}, {vr(wx,2)}, {vr(T,2)}")
    a(f"v_add_f32 v{TA}, v{TA}, v{TA+1}")
    a(f"v_add_f32 v{TB}, v{TB}, v{TB+1}")
    a("s_mov_b32 vcc_lo, 0xdddddddd")
    a("s_mov_b32 vcc_hi, 0xdddddddd")
    a(f"v_permlane32_swap_b32 v{TA}, v{TB}")
    a(f"s_mov_b32 s{S_TMP2}, 0xbf317218")
    PA = [ACC0, ACC0 + 4, ACC1, ACC1 + 4]
    for i in range(8):
        s, nt = i >> 1, i & 1
        if nt == 0:
            r0 = ACC0 + 8 * s
            for k in range(8):
                a(f"v_cndmask_b32_dpp v{r0+k}, v{SAV0+8*s+k}, v{r0+k}, vcc quad_perm:[0,0,0,0] row_mask:0xf bank_mask:0xf")
            for k in range(8):
                a(f"v_mul_f32 v{r0+k}, s{S_TMP2}, v{r0+k}")
            for k in range(4):
                a(f"v_cvt_pk_bf16_f32 v{PA[s]+k}, v{r0+2*k}, v{r0+2*k+1}")
            if s == 0:
                a(f"v_add_f32 v{TA}, v{TA}, v{TB}")
                a.wait_ds("pos")
                a(f"v_fma_f32 v78, v{TA}, s{S_TMP2}, v78")
            else:
                a.wait_ds(f"w{8+i}" if i >= 4 else "pos")
                a("s_nop 0")
        else:
            a.wait_ds(f"w{8+i}" if i >= 4 else "pos")
        U = UH1 if nt else UH0
        mfma(U, PA[s], BQ[i & 3], U)
        if i < 4:
            wh_read(12 + i)
        if i == 3:
            for w in range(2):
                for q in range(2):
                    for n2 in range(2):
                        a.dsop(f"ds_read_u16_d16_hi v{HD+8*w+2*q+n2}, v22 offset:{hd_off(w,q,n2)}", "hd0")
    for w in range(2):
        for q in range(2, 4):
            for n2 in range(2):
                a.dsop(f"ds_read_u16_d16_hi v{HD+8*w+2*q+n2}, v22 offset:{hd_off(w,q,n2)}", "hd1")
    pt("gemm")
    a("v_cvt_pk_bf16_f32 v78, v78, v78")
    a(f"s_mov_b32 s{S_X+1}, {N*128}")
    a(f"buffer_store_short v78, v77, {sr(S_OUT)}, s{S_X+1} offen")
    a(f"v_bfe_u32 v24, v{LANE}, 4, 2")
    a(f"v_bfe_u32 v25, v{LANE}, 3, 1")
    a(f"v_and_b32 v26, 7, v{LANE}")
    a(f"v_lshl_add_u32 v27, v24, 2, v25")
    a(f"v_lshlrev_b32 v79, 1, v24")
    a(f"v_xor_b32 v79, v79, v26")
    a(f"v_lshlrev_b32 v79, 4, v79")
    a(f"v_lshl_add_u32 v79, v27, 7, v79")
    a(f"v_add_u32 v79, s{S_TMP}, v79")
    a(f"v_lshl_add_u32 v24, v24, 4, s{S_WA}")
    a(f"v_mad_i32_i24 v24, v25, s{S_X}, v24")
    a(f"v_add_u32 v25, s{S_NB0}, v24")
    a(f"v_lshlrev_b32 v25, 7, v25")
    a(f"v_cmp_gt_u32 vcc, s{S_NN}, v24")
    a(f"v_lshl_add_u32 v25, v26, 4, v25")
    a(f"v_add_u32 v24, 64, v24")
    a(f"v_cndmask_b32 v26, v23, v25, vcc")
    a(f"v_cmp_gt_u32 vcc, s{S_NN}, v24")
    a(f"v_add_u32 v25, 8192, v25")
    a("s_waitcnt lgkmcnt(0)")
    a(f"v_cndmask_b32 v27, v23, v25, vcc")
    for w in range(2):
        U = [(UH1 if nt else UH0) + 4 * q + w for q in range(4) for nt in range(2)]
        T = 44 + 8 * w
        for i in range(8):
            a(f"v_mul_f32 v{T+i}, s{S_LOG}, v{U[i]}")
        for i in range(8):
            a(f"v_exp_f32 v{T+i}, v{T+i}")
        for i in range(8):
            a(f"v_add_f32 v{T+i}, 1.0, v{T+i}")
        for i in range(8):
            a(f"v_rcp_f32 v{T+i}, v{T+i}")
        for i in range(8):
            a(f"v_fma_f32 v{T+i}, v{T+i}, v{U[i]}, v{HD+8*w+i}")
        for i in range(0, 8, 2):
            a(f"v_cvt_pk_bf16_f32 v{T+i}, v{T+i}, v{T+i+1}")
        for i in range(0, 8, 2):
            a(f"ds_write_b16 v22, v{T+i} offset:{hd_off(w, i >> 1, 0)}")
            a(f"ds_write_b16_d16_hi v22, v{T+i} offset:{hd_off(w, i >> 1, 1)}")
    a(f"ds_read_b128 {vr(PRE0,4)}, v79")
    a(f"ds_read_b128 {vr(PRE0+4,4)}, v79 offset:2048")
    a("s_waitcnt lgkmcnt(1)")
    a(f"buffer_store_dwordx4 {vr(PRE0,4)}, v26, {sr(S_OUT)}, 0 offen")
    a("s_waitcnt lgkmcnt(0)")
    a(f"buffer_store_dwordx4 {vr(PRE0+4,4)}, v27, {sr(S_OUT)}, 0 offen")
    if cfg.get("stamps"):
        a("s_waitcnt vmcnt(0)")
        stamp(9)
        stamp(10, True)
        for i in range(12):
            a(f"v_writelane_b32 v40, s{90+i}, {i}")
        a(f"v_lshlrev_b32 v41, 2, v{LANE}")
        a("s_lshl_b32 s88, s2, 4")
        a(f"s_add_u32 s88, s88, s{S_WAVE}")
        a("s_lshl_b32 s88, s88, 6")
        a(f"s_add_u32 s88, s88, {0x1000000}")
        a("s_mov_b64 exec, 0xffff")
        a(f"buffer_store_dword v40, v41, {sr(S_WS)}, s88 offen")
        if cfg.get("dbgout"):
            a("s_mov_b64 exec, 1")
            a("v_mov_b32 v42, s100")
            a("s_not_b32 s89, s90")
            a("v_mov_b32 v43, s89")
            a(f"buffer_atomic_umax v42, v{V_ZERO}, {sr(S_DBG)}, 0 offen offset:8")
            a(f"buffer_atomic_umax v43, v{V_ZERO}, {sr(S_DBG)}, 0 offen offset:12")
            a(f"s_xor_b32 s88, s2, 77")
            a(f"s_or_b32 s88, s88, s{S_WAVE}")
            a("s_cmp_lg_u32 s88, 0")
            a("s_cbranch_scc1 L_end")
            a("s_mov_b64 exec, 0xfff")
            a(f"buffer_store_dword v40, v41, {sr(S_DBG)}, 0 offen offset:16")
    a("L_end:")
    a("s_endpgm")
    return a.text()


HEADER = open(os.path.join(os.path.dirname(os.path.abspath(__file__)), "header.txt")).read()


def build(cfg):
    out = HEADER
    out += f"; @launch grid=(256,1,1) block=(512,1,1) lds={LDS}\n"
    out += '.amdgcn_target "amdgcn-amd-amdhsa--gfx950"\n.text\n'
    out += f".globl {KN}\n.p2align 8\n.type {KN},@function\n" + kernel(cfg)
    out += f""".section .rodata,"a"
.p2align 6
.amdhsa_kernel {KN}
  .amdhsa_next_free_vgpr 256
  .amdhsa_next_free_sgpr {102 if cfg.get("stamps") else 88}
  .amdhsa_accum_offset 256
  .amdhsa_group_segment_fixed_size 0
  .amdhsa_kernarg_size 88
  .amdhsa_user_sgpr_count 2
  .amdhsa_user_sgpr_kernarg_segment_ptr 1
  .amdhsa_system_sgpr_workgroup_id_x 1
  .amdhsa_float_denorm_mode_32 3
.end_amdhsa_kernel
"""
    return out


if __name__ == "__main__":
    cfg = {}
    outp = "gather_scatter__cheap_equivariant_egnn__graph.s"
    for arg in sys.argv[1:]:
        if "=" in arg:
            k, v = arg.split("=", 1)
            cfg[k] = int(v) if v.lstrip("-").isdigit() else v
        else:
            outp = arg
    open(outp, "w").write(build(cfg))
    print("wrote", outp)
```
